```python
import torch

def _softmax(x, axis=-1):
    return torch.softmax(x, dim=axis)
def _gelu(x):
    return torch.nn.functional.gelu(x, approximate="tanh")
def _silu(x):
    return torch.nn.functional.silu(x)
def _sigmoid(x):
    return torch.sigmoid(x)
def _layernorm(x, axis=-1, eps=1e-5):
    m = x.mean(dim=axis, keepdim=True)
    v = x.var(dim=axis, keepdim=True, unbiased=False)
    return (x - m) / torch.sqrt(v + eps)
def _scatter_add(tgt, idx, src, axis=0):
    return tgt.clone().index_add_(axis, idx, src)
def _segment_sum(src, seg, n):
    out = torch.zeros((n,) + src.shape[1:], dtype=src.dtype)
    return out.index_add_(0, seg, src)
def _pad(x, pw):
    flat = tuple(v for pair in reversed(pw) for v in pair)
    return torch.nn.functional.pad(x, flat)

kernel_name = 'concat_heads__gqa_block_cached__sliding_block_cached__decode'

def setup_inputs():

    _w = (lambda a: (lambda t: t.to(torch.bfloat16) if t.is_floating_point() else t)(torch.as_tensor(a)))
    def _A_setup():
        B, Sq, D = 1, 1, 512
        Hq, Hkv, Sk, Dh = 32, 8, 32768, 128
        assert Hq % Hkv == 0, (Hq, Hkv)
        return {
            "x": _w((lambda *s: torch.randn(*s, dtype=torch.bfloat16) * 0.8)(B, Sq, D)),
            "k_cache": _w((lambda *s: torch.randn(*s, dtype=torch.bfloat16) * 1.6)(B, Hkv, Sk, Dh)),
            "v_cache": _w((lambda *s: torch.randn(*s, dtype=torch.bfloat16) * 0.2)(B, Hkv, Sk, Dh)),
            "wq": _w((lambda *s: torch.randn(*s, dtype=torch.bfloat16) * 1.6)(D, Hq * Dh) * (D ** -0.5)),
            "wo": _w((lambda *s: torch.randn(*s, dtype=torch.bfloat16) * 0.2)(Hq * Dh, D) * ((Hq * Dh) ** -0.5)),
        }
    _A_in = _A_setup()

    def _B_setup():
        B, Sq, D = 1, 1, 512
        Hq, Hkv, Sk, Dh = 32, 8, 32768, 128
        assert Hq % Hkv == 0, (Hq, Hkv)
        return {
            "x": _w((lambda *s: torch.randn(*s, dtype=torch.bfloat16) * 0.8)(B, Sq, D)),
            "k_cache": _w((lambda *s: torch.randn(*s, dtype=torch.bfloat16) * 1.6)(B, Hkv, Sk, Dh)),
            "v_cache": _w((lambda *s: torch.randn(*s, dtype=torch.bfloat16) * 0.2)(B, Hkv, Sk, Dh)),
            "wq": _w((lambda *s: torch.randn(*s, dtype=torch.bfloat16) * 1.6)(D, Hq * Dh) * (D ** -0.5)),
            "wo": _w((lambda *s: torch.randn(*s, dtype=torch.bfloat16) * 0.2)(Hq * Dh, D) * ((Hq * Dh) ** -0.5)),
        }
    _B_in = _B_setup()

    return {
        "A_x": _A_in["x"],
        "A_k_cache": _A_in["k_cache"],
        "A_v_cache": _A_in["v_cache"],
        "A_wq": _A_in["wq"],
        "A_wo": _A_in["wo"],
        "B_x": _B_in["x"],
        "B_k_cache": _B_in["k_cache"],
        "B_v_cache": _B_in["v_cache"],
        "B_wq": _B_in["wq"],
        "B_wo": _B_in["wo"],
    }

def reference(A_x, A_k_cache, A_v_cache, A_wq, A_wo, B_x, B_k_cache, B_v_cache, B_wq, B_wo):
    def _A_ref(x, k_cache, v_cache, wq, wo):
        B, Sq, D = x.shape
        Hq, Dh = 32, 128
        Hkv = k_cache.shape[1]
        rep = Hq // Hkv
        q = (lambda x, *d: x.permute(*d))((x @ wq).reshape(B, Sq, Hq, Dh), 0, 2, 1, 3)
        k = (lambda x, n, axis: torch.repeat_interleave(x, n, dim=axis))(k_cache, rep, axis=1)
        v = (lambda x, n, axis: torch.repeat_interleave(x, n, dim=axis))(v_cache, rep, axis=1)
        scores = torch.einsum("bhqd,bhkd->bhqk", q, k) * (Dh ** -0.5)
        p = _softmax(scores, axis=-1)
        o = torch.einsum("bhqk,bhkd->bhqd", p, v)
        return (lambda x, *d: x.permute(*d))(o, 0, 2, 1, 3).reshape(B, Sq, Hq * Dh) @ wo

    def _B_ref(x, k_cache, v_cache, wq, wo):
        B, Sq, D = x.shape
        Hq, Dh = 32, 128
        Hkv, Sk = k_cache.shape[1], k_cache.shape[2]
        W = min(4096, max(256, Sk // 4))
        rep = Hq // Hkv
        q = (lambda x, *d: x.permute(*d))((x @ wq).reshape(B, Sq, Hq, Dh), 0, 2, 1, 3)
        k = (lambda x, n, axis: torch.repeat_interleave(x, n, dim=axis))(k_cache[:, :, Sk - W:, :], rep, axis=1)
        v = (lambda x, n, axis: torch.repeat_interleave(x, n, dim=axis))(v_cache[:, :, Sk - W:, :], rep, axis=1)
        scores = torch.einsum("bhqd,bhkd->bhqk", q, k) * (Dh ** -0.5)
        p = _softmax(scores, axis=-1)
        o = torch.einsum("bhqk,bhkd->bhqd", p, v)
        return (lambda x, *d: x.permute(*d))(o, 0, 2, 1, 3).reshape(B, Sq, Hq * Dh) @ wo

    a = _A_ref(A_x, A_k_cache, A_v_cache, A_wq, A_wo)
    b = _B_ref(B_x, B_k_cache, B_v_cache, B_wq, B_wo)
    return torch.concatenate([a, b], axis=-1)
```

```python
import struct, sys

NAME = "concat_heads__gqa_block_cached__sliding_block_cached__decode"
WS_Q = 0x0
WS_ML = 0x8000
WS_O = 0x10000
WS_OP = 0x100000
WS_SIZE = 0x200000
CS = (128.0 ** -0.5) * 1.4426950408889634
def f32bits(x): return struct.unpack('<I', struct.pack('<f', x))[0]
CS_BITS = f32bits(CS)
NEGBIG = f32bits(-1.0e30)

out = []
def E(s): out.append("    " + s)
def L(s): out.append(s + ":")
def C(s): out.append("    ; " + s)

HEADER = open('cdna_kernels/%s.s.ref' % NAME).read().split('; Override launch')[0]

def kernel_begin(name):
    out.append(".globl %s" % name)
    out.append(".p2align 8")
    out.append(".type %s,@function" % name)
    out.append("%s:" % name)

def kd(name, vgpr, sgpr=102):
    return """.amdhsa_kernel %s
  .amdhsa_next_free_vgpr %d
  .amdhsa_next_free_sgpr %d
  .amdhsa_accum_offset %d
  .amdhsa_group_segment_fixed_size 0
  .amdhsa_kernarg_size 104
  .amdhsa_user_sgpr_count 2
  .amdhsa_user_sgpr_kernarg_segment_ptr 1
  .amdhsa_system_sgpr_workgroup_id_x 1
.end_amdhsa_kernel
""" % (name, vgpr, sgpr, (vgpr + 3) // 4 * 4)

def srd(s, size):
    E("s_mov_b32 s%d, 0x%x" % (s + 2, size))
    E("s_mov_b32 s%d, 0x00020000" % (s + 3))

def gen_qproj():
    kernel_begin("qproj_kernel")
    E("s_cmp_ge_u32 s2, 256")
    E("s_cbranch_scc1 L_q_end")
    E("s_load_dwordx2 s[4:5], s[0:1], 0")
    E("s_load_dwordx2 s[6:7], s[0:1], 24")
    E("s_load_dwordx2 s[8:9], s[0:1], 40")
    E("s_load_dwordx2 s[10:11], s[0:1], 64")
    E("s_load_dwordx2 s[28:29], s[0:1], 96")
    E("s_lshr_b32 s14, s2, 7")
    E("s_and_b32 s15, s2, 7")
    E("s_lshl_b32 s15, s15, 4")
    E("s_lshr_b32 s16, s2, 3")
    E("s_and_b32 s16, s16, 15")
    E("s_or_b32 s15, s15, s16")
    E("v_and_b32 v1, 3, v0")
    E("v_lshrrev_b32 v2, 2, v0")
    E("v_lshlrev_b32 v3, 13, v2")
    E("v_lshl_add_u32 v3, v1, 4, v3")
    E("v_lshlrev_b32 v4, 1, v2")
    E("s_waitcnt lgkmcnt(0)")
    E("s_cmp_eq_u32 s14, 0")
    E("s_cselect_b64 s[20:21], s[4:5], s[8:9]")
    E("s_cselect_b64 s[24:25], s[6:7], s[10:11]")
    srd(20, 1024)
    srd(24, 0x400000)
    srd(28, WS_SIZE)
    E("s_lshl_b32 s17, s15, 6")
    for i in range(8):
        E("s_add_u32 s%d, s17, 0x%x" % (32 + i, i * 0x80000))
    for i in range(8):
        E("buffer_load_dwordx4 v[%d:%d], v3, s[24:27], s%d offen" % (16 + 4 * i, 19 + 4 * i, 32 + i))
    for i in range(8):
        E("buffer_load_ushort v%d, v4, s[20:23], 0 offen offset:%d" % (8 + i, i * 128))
    for k in range(8):
        E("v_mov_b32 v%d, 0" % (48 + k))
    E("s_waitcnt vmcnt(0)")
    for i in range(8):
        E("v_lshlrev_b32 v%d, 16, v%d" % (8 + i, 8 + i))
    for i in range(8):
        for u in range(4):
            src = 16 + 4 * i + u
            E("v_lshlrev_b32 v56, 16, v%d" % src)
            E("v_and_b32 v57, 0xffff0000, v%d" % src)
            E("v_fmac_f32 v%d, v%d, v56" % (48 + 2 * u, 8 + i))
            E("v_fmac_f32 v%d, v%d, v57" % (49 + 2 * u, 8 + i))
    E("s_nop 1")
    for k in range(8):
        E("v_add_f32_dpp v%d, v%d, v%d row_ror:4 row_mask:0xf bank_mask:0xf" % (56 + k, 48 + k, 48 + k))
    E("s_nop 1")
    for k in range(8):
        E("v_add_f32_dpp v%d, v%d, v%d row_ror:8 row_mask:0xf bank_mask:0xf" % (48 + k, 56 + k, 56 + k))
    E("v_lshrrev_b32 v5, 4, v0")
    E("v_lshlrev_b32 v5, 7, v5")
    E("v_lshl_add_u32 v5, v1, 5, v5")
    E("v_and_b32 v6, 15, v0")
    E("v_cmp_gt_u32 vcc, 4, v6")
    E("s_and_saveexec_b64 s[40:41], vcc")
    E("ds_write_b128 v5, v[48:51]")
    E("ds_write_b128 v5, v[52:55] offset:16")
    E("s_mov_b64 exec, s[40:41]")
    E("s_waitcnt lgkmcnt(0)")
    E("s_barrier")
    E("v_cmp_gt_u32 vcc, 32, v0")
    E("s_and_saveexec_b64 s[40:41], vcc")
    E("s_cbranch_execz L_q_end")
    E("v_lshlrev_b32 v5, 2, v0")
    for r in range(16):
        E("ds_read_b32 v%d, v5 offset:%d" % (16 + r, r * 128))
    E("s_waitcnt lgkmcnt(0)")
    for r in range(1, 16):
        E("v_add_f32 v16, v16, v%d" % (16 + r))
    E("v_cvt_pk_bf16_f32 v16, v16, v16")
    E("s_lshl_b32 s18, s14, 13")
    E("s_lshl_b32 s19, s15, 6")
    E("s_add_u32 s18, s18, s19")
    E("v_lshlrev_b32 v5, 1, v0")
    E("buffer_store_short v16, v5, s[28:31], s18 offen offset:%d" % WS_Q)
    L("L_q_end")
    E("s_endpgm")

NT = ""
def gen_attn():
    kernel_begin("attn_kernel")
    E("s_cmp_ge_u32 s2, 288")
    E("s_cbranch_scc1 L_a_end")
    E("s_load_dwordx2 s[4:5], s[0:1], 8")
    E("s_load_dwordx2 s[6:7], s[0:1], 16")
    E("s_load_dwordx2 s[8:9], s[0:1], 48")
    E("s_load_dwordx2 s[10:11], s[0:1], 56")
    E("s_load_dwordx2 s[28:29], s[0:1], 96")
    E("v_lshrrev_b32 v1, 6, v0")
    E("v_and_b32 v2, 63, v0")
    E("v_readfirstlane_b32 s14, v1")
    E("s_and_b32 s16, s2, 7")
    E("s_lshr_b32 s17, s2, 3")
    E("s_cmp_ge_u32 s2, 256")
    E("s_cselect_b32 s15, 1, 0")
    E("s_cselect_b32 s18, 4, 0")
    E("s_sub_u32 s17, s17, s18")
    E("s_lshl_b32 s40, s16, 23")
    E("s_lshl_b32 s41, s17, 18")
    E("s_add_u32 s40, s40, s41")
    E("s_lshl_b32 s41, s14, 16")
    E("s_add_u32 s40, s40, s41")
    E("v_and_b32 v3, 15, v2")
    E("v_lshrrev_b32 v4, 4, v2")
    E("v_lshlrev_b32 v5, 8, v3")
    E("v_lshl_add_u32 v5, v4, 4, v5")
    E("v_lshlrev_b32 v6, 10, v4")
    E("v_lshl_add_u32 v6, v3, 4, v6")
    E("s_lshl_b32 s41, s15, 13")
    E("s_lshl_b32 s42, s16, 10")
    E("s_add_u32 s41, s41, s42")
    E("v_lshlrev_b32 v7, 8, v3")
    E("v_lshl_add_u32 v7, v4, 4, v7")
    E("v_add_u32 v7, s41, v7")
    E("v_mov_b32 v8, 0x80000000")
    E("v_cmp_gt_u32 vcc, 4, v3")
    E("s_nop 1")
    E("v_cndmask_b32 v7, v8, v7, vcc")
    E("s_waitcnt lgkmcnt(0)")
    E("s_cmp_eq_u32 s15, 0")
    E("s_cselect_b64 s[20:21], s[4:5], s[8:9]")
    E("s_cselect_b64 s[24:25], s[6:7], s[10:11]")
    srd(20, 0x4000000)
    srd(24, 0x4000000)
    srd(28, WS_SIZE)
    E("s_mov_b32 s44, 0x05040100")
    E("s_mov_b32 s45, 0x07060302")
    E("s_mov_b32 s46, 0x%08x" % CS_BITS)
    Q = 16; ACC = 32; S0 = 64; S1 = 68; P = 72; T = 76; SLOT = 96
    M = 9; LS = 10; NMC = 11; MT = 12; TMP = 13; MT2 = 14; AL = 15
    for j in range(4):
        E("buffer_load_dwordx4 v[%d:%d], v7, s[28:31], 0 offen offset:%d" % (Q + 4 * j, Q + 4 * j + 3, WS_Q + j * 64))
    NH = 16
    NSLOT = 5
    def issue(h):
        n = h // 2
        base = SLOT + 32 * (h % NSLOT)
        E("s_add_u32 s48, s40, 0x%x" % (n * 8192))
        E("s_add_u32 s49, s40, 0x%x" % (n * 8192 + 4096))
        if h % 2 == 0:
            for t in range(2):
                for j in range(4):
                    r = base + (t * 4 + j) * 4
                    E("buffer_load_dwordx4 v[%d:%d], v5, s[20:23], s%d offen offset:%d%s" % (r, r + 3, 48 + t, j * 64, NT))
        else:
            for t in range(2):
                for rr in range(4):
                    r = base + (t * 4 + rr) * 4
                    E("buffer_load_dwordx4 v[%d:%d], v6, s[24:27], s%d offen offset:%d%s" % (r, r + 3, 48 + t, rr * 256, NT))
    for h in range(NSLOT):
        issue(h)
    for k in range(32):
        E("v_mov_b32 v%d, 0" % (ACC + k))
    E("v_mov_b32 v%d, 0x%08x" % (M, NEGBIG))
    E("v_mov_b32 v%d, 0" % LS)
    for n in range(8):
        C("---- tile %d" % n)
        h = 2 * n
        base = SLOT + 32 * (h % NSLOT)
        issued = min(NH, h + NSLOT)
        E("s_waitcnt vmcnt(%d)" % (8 * (issued - h - 1)))
        for j in range(4):
            for t in range(2):
                r = base + (t * 4 + j) * 4
                S = S0 if t == 0 else S1
                c = "0" if j == 0 else "v[%d:%d]" % (S, S + 3)
                E("v_mfma_f32_16x16x32_bf16 v[%d:%d], v[%d:%d], v[%d:%d], %s" % (S, S + 3, r, r + 3, Q + 4 * j, Q + 4 * j + 3, c))
        if h + NSLOT < NH:
            issue(h + NSLOT)
        else:
            E("s_nop 7")
            E("s_nop 1")
        E("v_max3_f32 v%d, v%d, v%d, v%d" % (MT, S0, S0 + 1, S0 + 2))
        E("v_max3_f32 v%d, v%d, v%d, v%d" % (MT2, S0 + 3, S1, S1 + 1))
        E("v_max3_f32 v%d, v%d, v%d, v%d" % (MT, MT, S1 + 2, S1 + 3))
        E("v_max_f32 v%d, v%d, v%d" % (MT, MT, MT2))
        E("v_mov_b32 v%d, v%d" % (TMP, MT))
        E("s_nop 1")
        E("v_permlane32_swap_b32 v%d, v%d" % (MT, TMP))
        E("v_max_f32 v%d, v%d, v%d" % (MT, MT, TMP))
        E("v_mov_b32 v%d, v%d" % (TMP, MT))
        E("s_nop 1")
        E("v_permlane16_swap_b32 v%d, v%d" % (MT, TMP))
        E("v_max3_f32 v%d, v%d, v%d, v%d" % (MT, MT, TMP, M))
        E("v_cmp_gt_f32 vcc, v%d, v%d" % (MT, M))
        E("s_cbranch_vccz L_nors_%d" % n)
        E("v_sub_f32 v%d, v%d, v%d" % (AL, M, MT))
        E("v_mul_f32 v%d, s46, v%d" % (AL, AL))
        E("v_exp_f32 v%d, v%d" % (AL, AL))
        E("s_nop 0")
        E("v_mul_f32 v%d, v%d, v%d" % (LS, LS, AL))
        for k in range(32):
            E("v_mul_f32 v%d, v%d, v%d" % (ACC + k, ACC + k, AL))
        L("L_nors_%d" % n)
        E("v_mov_b32 v%d, v%d" % (M, MT))
        E("v_mul_f32 v%d, s46, v%d" % (NMC, MT))
        for k in range(8):
            E("v_fma_f32 v%d, v%d, s46, -v%d" % (S0 + k, S0 + k, NMC))
        for k in range(8):
            E("v_exp_f32 v%d, v%d" % (S0 + k, S0 + k))
        E("s_nop 0")
        for w in range(4):
            E("v_cvt_pk_bf16_f32 v%d, v%d, v%d" % (P + w, S0 + 2 * w, S0 + 2 * w + 1))
        for k in range(8):
            E("v_add_f32 v%d, v%d, v%d" % (LS, LS, S0 + k))
        h = 2 * n + 1
        base = SLOT + 32 * (h % NSLOT)
        issued = min(NH, h + NSLOT)
        E("s_waitcnt vmcnt(%d)" % (8 * (issued - h - 1)))
        def perms(u):
            tb = T + 8 * (u & 1)
            for w in range(4):
                a = base + (2 * w) * 4 + u
                b = base + (2 * w + 1) * 4 + u
                E("v_perm_b32 v%d, v%d, v%d, s44" % (tb + w, b, a))
            for w in range(4):
                a = base + (2 * w) * 4 + u
                b = base + (2 * w + 1) * 4 + u
                E("v_perm_b32 v%d, v%d, v%d, s45" % (tb + 4 + w, b, a))
        def mf(u):
            tb = T + 8 * (u & 1)
            for x in range(2):
                i = 2 * u + x
                E("v_mfma_f32_16x16x32_bf16 v[%d:%d], v[%d:%d], v[%d:%d], v[%d:%d]" % (ACC + 4 * i, ACC + 4 * i + 3, tb + 4 * x, tb + 4 * x + 3, P, P + 3, ACC + 4 * i, ACC + 4 * i + 3))
        perms(0); perms(1); mf(0); perms(2); mf(1); perms(3)
        if h + NSLOT < NH:
            issue(h + NSLOT)
        mf(2)
        E("s_nop 1")
        mf(3)
    C("---- epilogue")
    E("v_mov_b32 v%d, v%d" % (TMP, LS))
    E("s_nop 1")
    E("v_permlane32_swap_b32 v%d, v%d" % (LS, TMP))
    E("v_add_f32 v%d, v%d, v%d" % (LS, LS, TMP))
    E("v_mov_b32 v%d, v%d" % (TMP, LS))
    E("s_nop 1")
    E("v_permlane16_swap_b32 v%d, v%d" % (LS, TMP))
    E("v_add_f32 v%d, v%d, v%d" % (LS, LS, TMP))
    E("s_lshl_b32 s41, s14, 13")
    E("v_lshlrev_b32 v3, 4, v2")
    E("v_add_u32 v3, s41, v3")
    E("s_lshl_b32 s41, s14, 9")
    E("v_lshlrev_b32 v4, 3, v2")
    E("v_add_u32 v4, s41, v4")
    E("v_mov_b32 v%d, v%d" % (MT, M))
    E("v_mov_b32 v%d, v%d" % (TMP, LS))
    E("s_nop 4")
    for i in range(8):
        E("ds_write_b128 v3, v[%d:%d] offset:%d" % (ACC + 4 * i, ACC + 4 * i + 3, i * 1024))
    E("ds_write_b64 v4, v[%d:%d] offset:32768" % (MT, TMP))
    E("s_waitcnt lgkmcnt(0)")
    E("s_barrier")
    E("v_cmp_gt_u32 vcc, 128, v0")
    E("s_and_saveexec_b64 s[50:51], vcc")
    E("s_cbranch_execz L_a_end")
    E("v_lshrrev_b32 v3, 4, v0")
    E("v_bfe_u32 v4, v0, 2, 2")
    E("v_and_b32 v5, 3, v0")
    E("v_lshlrev_b32 v6, 10, v3")
    E("v_lshl_add_u32 v6, v4, 8, v6")
    E("v_lshl_add_u32 v6, v5, 4, v6")
    E("v_lshlrev_b32 v7, 3, v5")
    for w in range(4):
        E("ds_read_b128 v[%d:%d], v6 offset:%d" % (32 + 4 * w, 35 + 4 * w, w * 8192))
    for w in range(4):
        E("ds_read_b64 v[%d:%d], v7 offset:%d" % (48 + 2 * w, 49 + 2 * w, 32768 + w * 512))
    E("s_waitcnt lgkmcnt(0)")
    E("v_max3_f32 v56, v48, v50, v52")
    E("v_max_f32 v56, v56, v54")
    for w in range(4):
        E("v_sub_f32 v%d, v%d, v56" % (58 + w, 48 + 2 * w))
        E("v_mul_f32 v%d, s46, v%d" % (58 + w, 58 + w))
        E("v_exp_f32 v%d, v%d" % (58 + w, 58 + w))
    E("s_nop 0")
    E("v_mul_f32 v57, v58, v49")
    for w in range(1, 4):
        E("v_fmac_f32 v57, v%d, v%d" % (58 + w, 49 + 2 * w))
    for r in range(4):
        E("v_mul_f32 v%d, v58, v%d" % (64 + r, 32 + r))
        for w in range(1, 4):
            E("v_fmac_f32 v%d, v%d, v%d" % (64 + r, 58 + w, 32 + 4 * w + r))
    E("s_lshl_b32 s41, s2, 11")
    E("s_add_u32 s41, s41, 0x%x" % WS_O)
    E("v_lshlrev_b32 v8, 9, v5")
    E("v_lshl_add_u32 v8, v3, 6, v8")
    E("v_lshl_add_u32 v8, v4, 4, v8")
    E("buffer_store_dwordx4 v[64:67], v8, s[28:31], s41 offen")
    E("v_cmp_gt_u32 vcc, 4, v0")
    E("s_and_saveexec_b64 s[52:53], vcc")
    E("s_lshl_b32 s41, s2, 5")
    E("s_add_u32 s41, s41, 0x%x" % WS_ML)
    E("buffer_store_dwordx2 v[56:57], v7, s[28:31], s41 offen")
    L("L_a_end")
    E("s_endpgm")

def gen_comb():
    kernel_begin("comb_kernel")
    E("s_cmp_ge_u32 s2, 256")
    E("s_cbranch_scc1 L_c_end")
    E("s_load_dwordx2 s[4:5], s[0:1], 32")
    E("s_load_dwordx2 s[6:7], s[0:1], 72")
    E("s_load_dwordx2 s[24:25], s[0:1], 80")
    E("s_load_dwordx2 s[32:33], s[0:1], 88")
    E("s_load_dwordx2 s[28:29], s[0:1], 96")
    E("s_lshr_b32 s14, s2, 7")
    E("s_lshr_b32 s15, s2, 2")
    E("s_and_b32 s15, s15, 31")
    E("s_and_b32 s16, s2, 3")
    E("s_lshr_b32 s17, s15, 2")
    E("s_and_b32 s18, s15, 3")
    E("s_cmp_eq_u32 s14, 0")
    E("s_cselect_b32 s19, 32, 4")
    E("s_lshl_b32 s40, s14, 8")
    E("s_add_u32 s40, s40, s17")
    E("v_and_b32 v1, 63, v0")
    E("v_lshrrev_b32 v2, 6, v0")
    E("v_and_b32 v3, 15, v0")
    E("v_lshrrev_b32 v4, 4, v0")
    E("v_lshlrev_b32 v5, 13, v4")
    E("v_lshl_add_u32 v5, v3, 4, v5")
    E("s_lshl_b32 s41, s15, 17")
    E("s_lshl_b32 s42, s16, 8")
    E("s_add_u32 s41, s41, s42")
    E("s_add_u32 s42, s41, 4096")
    E("v_and_b32 v6, 31, v0")
    E("v_lshlrev_b32 v7, 8, v6")
    E("s_lshl_b32 s43, s40, 5")
    E("s_lshl_b32 s44, s18, 3")
    E("s_add_u32 s43, s43, s44")
    E("s_add_u32 s43, s43, 0x%x" % WS_ML)
    E("v_lshrrev_b32 v8, 5, v0")
    E("v_lshlrev_b32 v9, 16, v8")
    E("v_lshl_add_u32 v9, v6, 4, v9")
    E("v_lshlrev_b32 v10, 2, v8")
    E("v_mov_b32 v11, 0x80000000")
    E("v_cmp_gt_u32 vcc, s19, v10")
    E("s_nop 1")
    E("v_cndmask_b32 v9, v11, v9, vcc")
    E("s_lshl_b32 s44, s40, 11")
    E("s_lshl_b32 s45, s18, 9")
    E("s_add_u32 s44, s44, s45")
    E("s_add_u32 s44, s44, 0x%x" % WS_O)
    for u in range(1, 4):
        E("s_add_u32 s%d, s44, 0x%x" % (44 + u, u * 16384))
    E("s_mov_b32 s48, 0x%08x" % CS_BITS)
    E("s_waitcnt lgkmcnt(0)")
    E("s_cmp_eq_u32 s14, 0")
    E("s_cselect_b64 s[20:21], s[4:5], s[6:7]")
    srd(20, 0x400000)
    srd(24, 2048)
    srd(28, WS_SIZE)
    srd(32, 256)
    E("buffer_load_dwordx2 v[12:13], v7, s[28:31], s43 offen")
    for u in range(4):
        E("buffer_load_dwordx4 v[%d:%d], v9, s[28:31], s%d offen" % (16 + 4 * u, 19 + 4 * u, 44 + u))
    for ii in range(8):
        E("buffer_load_dwordx4 v[%d:%d], v5, s[20:23], s%d offen offset:%d" % (32 + 4 * ii, 35 + 4 * ii, 41 + (ii >> 2), (ii & 3) * 1024))
    E("s_waitcnt vmcnt(12)")
    E("v_mov_b32 v14, 0x%08x" % NEGBIG)
    E("v_cmp_gt_u32 vcc, s19, v6")
    E("s_nop 1")
    E("v_cndmask_b32 v12, v14, v12, vcc")
    E("v_cndmask_b32 v13, 0, v13, vcc")
    E("v_mov_b32 v14, v12")
    for sh in (1, 2, 4, 8):
        E("s_nop 1")
        E("v_max_f32_dpp v14, v14, v14 row_ror:%d row_mask:0xf bank_mask:0xf" % sh)
    E("v_mov_b32 v15, v14")
    E("s_nop 1")
    E("v_permlane16_swap_b32 v14, v15")
    E("v_max_f32 v14, v14, v15")
    E("v_sub_f32 v12, v12, v14")
    E("v_mul_f32 v12, s48, v12")
    E("v_exp_f32 v12, v12")
    E("s_nop 0")
    E("v_mul_f32 v13, v12, v13")
    for sh in (1, 2, 4, 8):
        E("s_nop 1")
        E("v_add_f32_dpp v13, v13, v13 row_ror:%d row_mask:0xf bank_mask:0xf" % sh)
    E("v_mov_b32 v15, v13")
    E("s_nop 1")
    E("v_permlane16_swap_b32 v13, v15")
    E("v_add_f32 v13, v13, v15")
    E("v_rcp_f32 v13, v13")
    E("v_lshlrev_b32 v10, 2, v10")
    for u in range(4):
        E("v_add_u32 v15, %d, v10" % (4 * u))
        E("ds_bpermute_b32 v%d, v15, v12" % (64 + u))
    E("s_waitcnt vmcnt(8) lgkmcnt(0)")
    for r in range(4):
        E("v_mul_f32 v%d, v64, v%d" % (68 + r, 16 + r))
        for u in range(1, 4):
            E("v_fmac_f32 v%d, v%d, v%d" % (68 + r, 64 + u, 16 + 4 * u + r))
    for r in range(4):
        E("v_mov_b32 v%d, v%d" % (72 + r, 68 + r))
    E("s_nop 1")
    for r in range(4):
        E("v_permlane32_swap_b32 v%d, v%d" % (68 + r, 72 + r))
    for r in range(4):
        E("v_add_f32 v%d, v%d, v%d" % (68 + r, 68 + r, 72 + r))
    E("v_lshlrev_b32 v15, 9, v2")
    E("v_lshl_add_u32 v15, v6, 4, v15")
    E("ds_write_b128 v15, v[68:71]")
    E("s_waitcnt lgkmcnt(0)")
    E("s_barrier")
    E("v_cmp_gt_u32 vcc, 128, v0")
    E("s_and_saveexec_b64 s[50:51], vcc")
    E("v_lshlrev_b32 v15, 2, v0")
    for w in range(4):
        E("ds_read_b32 v%d, v15 offset:%d" % (68 + w, w * 512))
    E("s_waitcnt lgkmcnt(0)")
    E("v_add_f32 v68, v68, v69")
    E("v_add_f32 v70, v70, v71")
    E("v_add_f32 v68, v68, v70")
    E("v_mul_f32 v68, v68, v13")
    E("v_cvt_pk_bf16_f32 v68, v68, v68")
    E("v_lshlrev_b32 v68, 16, v68")
    E("v_and_b32 v69, 15, v0")
    E("v_lshlrev_b32 v69, 3, v69")
    E("v_add_u32 v69, v69, v4")
    E("v_lshlrev_b32 v69, 2, v69")
    E("ds_write_b32 v69, v68 offset:2048")
    E("s_mov_b64 exec, s[50:51]")
    E("s_waitcnt lgkmcnt(0)")
    E("s_barrier")
    E("v_lshlrev_b32 v15, 5, v4")
    E("ds_read_b128 v[64:67], v15 offset:2048")
    E("ds_read_b128 v[68:71], v15 offset:2064")
    for k in range(8):
        E("v_mov_b32 v%d, 0" % (72 + k))
    E("s_waitcnt vmcnt(0) lgkmcnt(0)")
    for ii in range(8):
        for u in range(4):
            src = 32 + 4 * ii + u
            E("v_lshlrev_b32 v80, 16, v%d" % src)
            E("v_and_b32 v81, 0xffff0000, v%d" % src)
            E("v_fmac_f32 v%d, v%d, v80" % (72 + 2 * u, 64 + ii))
            E("v_fmac_f32 v%d, v%d, v81" % (73 + 2 * u, 64 + ii))
    for k in range(8):
        E("v_mov_b32 v%d, v%d" % (80 + k, 72 + k))
    E("s_nop 1")
    for k in range(8):
        E("v_permlane16_swap_b32 v%d, v%d" % (72 + k, 80 + k))
    for k in range(8):
        E("v_add_f32 v%d, v%d, v%d" % (72 + k, 72 + k, 80 + k))
    for k in range(8):
        E("v_mov_b32 v%d, v%d" % (80 + k, 72 + k))
    E("s_nop 1")
    for k in range(8):
        E("v_permlane32_swap_b32 v%d, v%d" % (72 + k, 80 + k))
    for k in range(8):
        E("v_add_f32 v%d, v%d, v%d" % (72 + k, 72 + k, 80 + k))
    E("v_lshlrev_b32 v15, 9, v2")
    E("v_lshl_add_u32 v15, v3, 5, v15")
    E("ds_write_b128 v15, v[72:75] offset:4096")
    E("ds_write_b128 v15, v[76:79] offset:4112")
    E("s_waitcnt lgkmcnt(0)")
    E("s_barrier")
    E("s_lshl_b32 s52, s14, 2")
    E("s_add_u32 s52, s52, s16")
    E("s_lshl_b32 s53, s52, 14")
    E("s_add_u32 s53, s53, 0x%x" % WS_OP)
    E("s_lshl_b32 s54, s15, 9")
    E("s_add_u32 s54, s54, s53")
    E("v_cmp_gt_u32 vcc, 128, v0")
    E("s_and_saveexec_b64 s[50:51], vcc")
    E("v_lshlrev_b32 v15, 2, v0")
    for w in range(4):
        E("ds_read_b32 v%d, v15 offset:%d" % (68 + w, 4096 + w * 512))
    E("s_waitcnt lgkmcnt(0)")
    E("v_add_f32 v68, v68, v69")
    E("v_add_f32 v70, v70, v71")
    E("v_add_f32 v68, v68, v70")
    E("buffer_store_dword v68, v15, s[28:31], s54 offen sc1")
    E("s_mov_b64 exec, s[50:51]")
    E("s_waitcnt vmcnt(0)")
    E("s_barrier")
    E("v_cmp_eq_u32 vcc, 0, v0")
    E("s_and_saveexec_b64 s[50:51], vcc")
    E("s_lshl_b32 s55, s52, 5")
    E("v_mov_b32 v15, s55")
    E("v_mov_b32 v68, 1")
    E("buffer_atomic_add v68, v15, s[32:35], 0 offen sc0 sc1")
    E("s_waitcnt vmcnt(0)")
    E("v_mov_b32 v15, 0")
    E("ds_write_b32 v15, v68 offset:8192")
    E("s_mov_b64 exec, s[50:51]")
    E("s_waitcnt lgkmcnt(0)")
    E("s_barrier")
    E("v_mov_b32 v15, 0")
    E("ds_read_b32 v68, v15 offset:8192")
    E("s_waitcnt lgkmcnt(0)")
    E("v_readfirstlane_b32 s56, v68")
    E("s_cmp_lg_u32 s56, 31")
    E("s_cbranch_scc1 L_c_end")
    E("v_and_b32 v15, 127, v0")
    E("v_lshrrev_b32 v14, 7, v0")
    E("v_lshlrev_b32 v13, 13, v14")
    E("v_lshl_add_u32 v13, v15, 2, v13")
    for i in range(16):
        E("buffer_load_dword v%d, v13, s[28:31], s53 offen offset:%d sc1" % (32 + i, (i & 7) * 512) if i < 8 else
          "buffer_load_dword v%d, v13, s[28:31], s57 offen offset:%d sc1" % (32 + i, (i & 7) * 512))
        if i == 7:
            E("s_add_u32 s57, s53, 4096")
    E("s_waitcnt vmcnt(0)")
    for i in range(1, 16):
        E("v_add_f32 v32, v32, v%d" % (32 + i))
    E("v_lshlrev_b32 v13, 2, v0")
    E("ds_write_b32 v13, v32 offset:8448")
    E("s_waitcnt lgkmcnt(0)")
    E("s_barrier")
    E("v_cmp_gt_u32 vcc, 128, v0")
    E("s_and_saveexec_b64 s[50:51], vcc")
    E("s_cbranch_execz L_c_end")
    E("ds_read_b32 v33, v13 offset:8960")
    E("s_waitcnt lgkmcnt(0)")
    E("v_add_f32 v32, v32, v33")
    E("v_cvt_pk_bf16_f32 v32, v32, v32")
    E("s_lshl_b32 s58, s52, 8")
    E("v_lshlrev_b32 v13, 1, v0")
    E("buffer_store_short v32, v13, s[24:27], s58 offen")
    L("L_c_end")
    E("s_endpgm")

def main():
    global NT
    if len(sys.argv) > 2 and sys.argv[2] == 'nt': NT = " nt"
    out.append(HEADER.rstrip())
    out.append("; @launch kernel=qproj_kernel grid=(256,1,1) block=(256,1,1) lds=2048")
    out.append("; @launch kernel=attn_kernel grid=(288,1,1) block=(256,1,1) lds=34816")
    out.append("; @launch kernel=comb_kernel grid=(256,1,1) block=(256,1,1) lds=10240")
    out.append('.amdgcn_target "amdgcn-amd-amdhsa--gfx950"')
    out.append(".text")
    gen_qproj()
    gen_attn()
    gen_comb()
    out.append('.section .rodata,"a"')
    out.append(".p2align 6")
    out.append(kd("qproj_kernel", 64))
    out.append(".p2align 6")
    out.append(kd("attn_kernel", 256))
    out.append(".p2align 6")
    out.append(kd("comb_kernel", 96))
    open(sys.argv[1], 'w').write("\n".join(out) + "\n")
main()
```

```python
import struct, sys

NAME = "concat_heads__gqa_block_cached__sliding_block_cached__decode"
KN = NAME + "_kernel"
WS_Q = 0x0
WS_ML = 0x8000
WS_O = 0x10000
WS_OP = 0x200000
WS_SIZE = 0x400000
CS = (128.0 ** -0.5) * 1.4426950408889634
def f32bits(x): return struct.unpack('<I', struct.pack('<f', x))[0]
CS_BITS = f32bits(CS)
NEGBIG = f32bits(-1.0e30)
DBG_Q = 0
DBG_P = 128
DBG_O = 192

out = []
def E(s): out.append("    " + s)
def L(s): out.append(s + ":")
def C(s): out.append("    ; " + s)
HEADER = open('cdna_kernels/%s.s.ref' % NAME).read().split('; Override launch')[0]

def srd(s, size):
    E("s_mov_b32 s%d, 0x%x" % (s + 2, size))
    E("s_mov_b32 s%d, 0x00020000" % (s + 3))

NT = " nt"
NTW = ""
LDS_ACC = 0
LDS_ML = 32768
LDS_QP = 36864
LDS_Q = 40960
LDS_T1 = 45056
LDS_TO = 47104
LDS_T3 = 49152
LDS_FL = 51200
LDS_T4 = 51456
LDS_TOTAL = 53248

Q = 16; ACC = 32; S0 = 64; S1 = 68; P = 72; T = 76; SLOT = 96
M = 9; LS = 10; NMC = 11; MT = 12; TMP = 13; MT2 = 14; AL = 15
NSLOT = 5
WREG = SLOT + 32 * 1

def issue(h):
    n = h // 2
    base = SLOT + 32 * (h % NSLOT)
    E("s_add_u32 s48, s40, 0x%x" % (n * 8192))
    E("s_add_u32 s49, s40, 0x%x" % (n * 8192 + 4096))
    if h % 2 == 0:
        for t in range(2):
            for j in range(4):
                r = base + (t * 4 + j) * 4
                E("buffer_load_dwordx4 v[%d:%d], v5, s[20:23], s%d offen offset:%d%s" % (r, r + 3, 48 + t, j * 64, NT))
    else:
        for t in range(2):
            for rr in range(4):
                r = base + (t * 4 + rr) * 4
                E("buffer_load_dwordx4 v[%d:%d], v6, s[24:27], s%d offen offset:%d%s" % (r, r + 3, 48 + t, rr * 256, NT))

def main_loop(ntiles, tag, wo_prefetch):
    NH = 2 * ntiles
    extra = 0
    for n in range(ntiles):
        C("---- tile %d" % n)
        h = 2 * n
        base = SLOT + 32 * (h % NSLOT)
        issued = min(NH, h + NSLOT)
        E("s_waitcnt vmcnt(%d)" % (8 * (issued - h - 1) + extra))
        for j in range(4):
            for t in range(2):
                r = base + (t * 4 + j) * 4
                S = S0 if t == 0 else S1
                c = "0" if j == 0 else "v[%d:%d]" % (S, S + 3)
                E("v_mfma_f32_16x16x32_bf16 v[%d:%d], v[%d:%d], v[%d:%d], %s" % (S, S + 3, r, r + 3, Q + 4 * j, Q + 4 * j + 3, c))
        if h + NSLOT < NH:
            issue(h + NSLOT)
        else:
            E("s_nop 7")
            E("s_nop 1")
        E("v_max3_f32 v%d, v%d, v%d, v%d" % (MT, S0, S0 + 1, S0 + 2))
        E("v_max3_f32 v%d, v%d, v%d, v%d" % (MT2, S0 + 3, S1, S1 + 1))
        E("v_max3_f32 v%d, v%d, v%d, v%d" % (MT, MT, S1 + 2, S1 + 3))
        E("v_max_f32 v%d, v%d, v%d" % (MT, MT, MT2))
        E("v_mov_b32 v%d, v%d" % (TMP, MT))
        E("s_nop 1")
        E("v_permlane32_swap_b32 v%d, v%d" % (MT, TMP))
        E("v_max_f32 v%d, v%d, v%d" % (MT, MT, TMP))
        E("v_mov_b32 v%d, v%d" % (TMP, MT))
        E("s_nop 1")
        E("v_permlane16_swap_b32 v%d, v%d" % (MT, TMP))
        E("v_max3_f32 v%d, v%d, v%d, v%d" % (MT, MT, TMP, M))
        E("v_cmp_gt_f32 vcc, v%d, v%d" % (MT, M))
        E("s_cbranch_vccz L_nors_%s_%d" % (tag, n))
        E("v_sub_f32 v%d, v%d, v%d" % (AL, M, MT))
        E("v_mul_f32 v%d, s46, v%d" % (AL, AL))
        E("v_exp_f32 v%d, v%d" % (AL, AL))
        E("s_nop 0")
        E("v_mul_f32 v%d, v%d, v%d" % (LS, LS, AL))
        for k in range(32):
            E("v_mul_f32 v%d, v%d, v%d" % (ACC + k, ACC + k, AL))
        L("L_nors_%s_%d" % (tag, n))
        E("v_mov_b32 v%d, v%d" % (M, MT))
        E("v_mul_f32 v%d, s46, v%d" % (NMC, MT))
        for k in range(8):
            E("v_fma_f32 v%d, v%d, s46, -v%d" % (S0 + k, S0 + k, NMC))
        for k in range(8):
            E("v_exp_f32 v%d, v%d" % (S0 + k, S0 + k))
        E("s_nop 0")
        for w in range(4):
            E("v_cvt_pk_bf16_f32 v%d, v%d, v%d" % (P + w, S0 + 2 * w, S0 + 2 * w + 1))
        for k in range(8):
            E("v_add_f32 v%d, v%d, v%d" % (LS, LS, S0 + k))
        h = 2 * n + 1
        base = SLOT + 32 * (h % NSLOT)
        issued = min(NH, h + NSLOT)
        E("s_waitcnt vmcnt(%d)" % (8 * (issued - h - 1) + extra))
        def perms(u):
            tb = T + 8 * (u & 1)
            for w in range(4):
                a = base + (2 * w) * 4 + u
                b = base + (2 * w + 1) * 4 + u
                E("v_perm_b32 v%d, v%d, v%d, s44" % (tb + w, b, a))
            for w in range(4):
                a = base + (2 * w) * 4 + u
                b = base + (2 * w + 1) * 4 + u
                E("v_perm_b32 v%d, v%d, v%d, s45" % (tb + 4 + w, b, a))
        def mf(u):
            tb = T + 8 * (u & 1)
            for x in range(2):
                i = 2 * u + x
                E("v_mfma_f32_16x16x32_bf16 v[%d:%d], v[%d:%d], v[%d:%d], v[%d:%d]" % (ACC + 4 * i, ACC + 4 * i + 3, tb + 4 * x, tb + 4 * x + 3, P, P + 3, ACC + 4 * i, ACC + 4 * i + 3))
        perms(0); perms(1); mf(0); perms(2); mf(1); perms(3)
        if h + NSLOT < NH:
            issue(h + NSLOT)
        elif wo_prefetch and h == 11:
            C("wo slice prefetch")
            for ii in range(8):
                E("buffer_load_dwordx4 v[%d:%d], v8, s[32:35], s%d offen offset:%d%s" % (WREG + 4 * ii, WREG + 4 * ii + 3, 56 + (ii >> 2), (ii & 3) * 1024, NTW))
            extra = 8
        mf(2)
        E("s_nop 1")
        mf(3)
    E("v_mov_b32 v%d, v%d" % (TMP, LS))
    E("s_nop 1")
    E("v_permlane32_swap_b32 v%d, v%d" % (LS, TMP))
    E("v_add_f32 v%d, v%d, v%d" % (LS, LS, TMP))
    E("v_mov_b32 v%d, v%d" % (TMP, LS))
    E("s_nop 1")
    E("v_permlane16_swap_b32 v%d, v%d" % (LS, TMP))
    E("v_add_f32 v%d, v%d, v%d" % (LS, LS, TMP))
    E("v_mov_b32 v%d, v%d" % (MT, M))
    E("v_mov_b32 v%d, v%d" % (TMP, LS))

def init_state():
    for k in range(32):
        E("v_mov_b32 v%d, 0" % (ACC + k))
    E("v_mov_b32 v%d, 0x%08x" % (M, NEGBIG))
    E("v_mov_b32 v%d, 0" % LS)

def read_q(ab):
    E("v_lshlrev_b32 v7, 8, v3")
    E("v_lshl_add_u32 v7, v4, 4, v7")
    for k in range(16):
        E("v_mov_b32 v%d, 0" % (Q + k))
    E("v_cmp_gt_u32 vcc, 4, v3")
    E("s_and_saveexec_b64 s[50:51], vcc")
    for j in range(4):
        E("ds_read_b128 v[%d:%d], v7 offset:%d" % (Q + 4 * j, Q + 4 * j + 3, LDS_Q + ab * 1024 + j * 64))
    E("s_mov_b64 exec, s[50:51]")
    E("s_waitcnt lgkmcnt(0)")

def poll(label, off_sgpr_or_imm, target, vtmp=7, vaddr=8):
    E("s_mov_b32 s60, 0")
    E("v_mov_b32 v%d, %s" % (vaddr, off_sgpr_or_imm))
    L(label)
    E("buffer_load_dword v%d, v%d, s[36:39], 0 offen sc1" % (vtmp, vaddr))
    E("s_waitcnt vmcnt(0)")
    E("v_readfirstlane_b32 s61, v%d" % vtmp)
    E("s_cmp_ge_u32 s61, %d" % target)
    E("s_cbranch_scc1 %s_done" % label)
    E("s_add_u32 s60, s60, 1")
    E("s_cmp_lt_u32 s60, 0x40000")
    E("s_cbranch_scc0 %s_done" % label)
    E("s_sleep 1")
    E("s_branch %s" % label)
    L(label + "_done")

def gen():
    out.append(".globl %s" % KN)
    out.append(".p2align 8")
    out.append(".type %s,@function" % KN)
    out.append("%s:" % KN)
    E("s_cmp_ge_u32 s2, 256")
    E("s_cbranch_scc1 L_end")
    E("s_load_dwordx2 s[4:5], s[0:1], 0")
    E("s_load_dwordx2 s[6:7], s[0:1], 8")
    E("s_load_dwordx2 s[8:9], s[0:1], 16")
    E("s_load_dwordx2 s[10:11], s[0:1], 24")
    E("s_load_dwordx2 s[12:13], s[0:1], 32")
    E("s_load_dwordx2 s[62:63], s[0:1], 40")
    E("s_load_dwordx2 s[64:65], s[0:1], 48")
    E("s_load_dwordx2 s[66:67], s[0:1], 56")
    E("s_load_dwordx2 s[68:69], s[0:1], 64")
    E("s_load_dwordx2 s[70:71], s[0:1], 72")
    E("s_load_dwordx2 s[72:73], s[0:1], 80")
    E("s_load_dwordx2 s[36:37], s[0:1], 88")
    E("s_load_dwordx2 s[28:29], s[0:1], 96")
    E("v_lshrrev_b32 v1, 6, v0")
    E("v_and_b32 v2, 63, v0")
    E("v_readfirstlane_b32 s14, v1")
    E("s_and_b32 s16, s2, 7")
    E("s_lshr_b32 s17, s2, 3")
    E("s_lshr_b32 s15, s2, 7")
    E("s_lshl_b32 s18, s16, 4")
    E("s_and_b32 s19, s17, 15")
    E("s_or_b32 s18, s18, s19")
    E("s_lshr_b32 s52, s17, 4")
    E("s_lshr_b32 s53, s17, 2")
    E("s_and_b32 s53, s53, 3")
    E("s_and_b32 s54, s17, 3")
    E("s_lshl_b32 s55, s16, 2")
    E("s_add_u32 s55, s55, s53")
    E("s_lshl_b32 s56, s55, 17")
    E("s_lshl_b32 s57, s54, 8")
    E("s_add_u32 s56, s56, s57")
    E("s_add_u32 s57, s56, 4096")
    E("v_and_b32 v3, 15, v2")
    E("v_lshrrev_b32 v4, 4, v2")
    E("v_lshlrev_b32 v5, 8, v3")
    E("v_lshl_add_u32 v5, v4, 4, v5")
    E("v_lshlrev_b32 v6, 10, v4")
    E("v_lshl_add_u32 v6, v3, 4, v6")
    E("s_mov_b32 s44, 0x05040100")
    E("s_mov_b32 s45, 0x07060302")
    E("s_mov_b32 s46, 0x%08x" % CS_BITS)
    E("s_waitcnt lgkmcnt(0)")
    srd(28, WS_SIZE)
    srd(36, 256)
    srd(72, 2048)
    E("s_cmp_eq_u32 s52, 0")
    E("s_cselect_b64 s[32:33], s[12:13], s[70:71]")
    srd(32, 0x400000)
    E("s_cmp_eq_u32 s14, 4")
    E("s_cbranch_scc1 L_waveB")
    E("s_cmp_eq_u32 s15, 0")
    E("s_cselect_b64 s[76:77], s[4:5], s[62:63]")
    E("s_cselect_b64 s[80:81], s[10:11], s[68:69]")
    srd(76, 1024)
    srd(80, 0x400000)
    E("s_mov_b64 s[20:21], s[6:7]")
    E("s_mov_b64 s[24:25], s[8:9]")
    srd(20, 0x4000000)
    srd(24, 0x4000000)
    E("s_lshl_b32 s40, s16, 23")
    E("s_lshl_b32 s41, s17, 18")
    E("s_add_u32 s40, s40, s41")
    E("s_lshl_b32 s41, s14, 16")
    E("s_add_u32 s40, s40, s41")
    E("v_and_b32 v10, 3, v0")
    E("v_lshrrev_b32 v11, 2, v0")
    E("v_lshlrev_b32 v12, 13, v11")
    E("v_lshl_add_u32 v12, v10, 4, v12")
    E("v_lshlrev_b32 v13, 1, v11")
    E("s_lshl_b32 s41, s18, 6")
    for i in range(8):
        E("s_add_u32 s%d, s41, 0x%x" % (84 + i, i * 0x80000))
    for i in range(8):
        E("buffer_load_dwordx4 v[%d:%d], v12, s[80:83], s%d offen%s" % (32 + 4 * i, 35 + 4 * i, 84 + i, NTW))
    for i in range(8):
        E("buffer_load_ushort v%d, v13, s[76:79], 0 offen offset:%d" % (64 + i, i * 128))
    for h in range(NSLOT):
        issue(h)
    E("v_lshrrev_b32 v8, 4, v0")
    E("v_lshlrev_b32 v8, 13, v8")
    E("v_lshl_add_u32 v8, v3, 4, v8")
    for k in range(8):
        E("v_mov_b32 v%d, 0" % (72 + k))
    E("s_waitcnt vmcnt(40)")
    for i in range(8):
        E("v_lshlrev_b32 v%d, 16, v%d" % (64 + i, 64 + i))
    for i in range(8):
        for u in range(4):
            src = 32 + 4 * i + u
            E("v_lshlrev_b32 v80, 16, v%d" % src)
            E("v_and_b32 v81, 0xffff0000, v%d" % src)
            E("v_fmac_f32 v%d, v%d, v80" % (72 + 2 * u, 64 + i))
            E("v_fmac_f32 v%d, v%d, v81" % (73 + 2 * u, 64 + i))
    E("s_nop 1")
    for k in range(8):
        E("v_add_f32_dpp v%d, v%d, v%d row_ror:4 row_mask:0xf bank_mask:0xf" % (80 + k, 72 + k, 72 + k))
    E("s_nop 1")
    for k in range(8):
        E("v_add_f32_dpp v%d, v%d, v%d row_ror:8 row_mask:0xf bank_mask:0xf" % (72 + k, 80 + k, 80 + k))
    E("v_lshrrev_b32 v14, 4, v0")
    E("v_lshlrev_b32 v14, 7, v14")
    E("v_lshl_add_u32 v14, v10, 5, v14")
    E("v_cmp_gt_u32 vcc, 4, v3")
    E("s_and_saveexec_b64 s[50:51], vcc")
    E("ds_write_b128 v14, v[72:75] offset:%d" % LDS_QP)
    E("ds_write_b128 v14, v[76:79] offset:%d" % (LDS_QP + 16))
    E("s_mov_b64 exec, s[50:51]")
    E("s_waitcnt lgkmcnt(0)")
    E("s_barrier")
    init_state()
    E("s_barrier")
    read_q(0)
    main_loop(8, "a", True)
    E("s_lshl_b32 s41, s14, 13")
    E("v_lshlrev_b32 v7, 4, v2")
    E("v_add_u32 v7, s41, v7")
    E("s_lshl_b32 s41, s14, 9")
    E("v_lshlrev_b32 v14, 3, v2")
    E("v_add_u32 v14, s41, v14")
    E("s_nop 2")
    for i in range(8):
        E("ds_write_b128 v7, v[%d:%d] offset:%d" % (ACC + 4 * i, ACC + 4 * i + 3, LDS_ACC + i * 1024))
    E("ds_write_b64 v14, v[%d:%d] offset:%d" % (MT, TMP, LDS_ML))
    E("s_waitcnt lgkmcnt(0)")
    E("s_barrier")
    E("v_cmp_gt_u32 vcc, 128, v0")
    E("s_and_saveexec_b64 s[50:51], vcc")
    E("s_cbranch_execz L_skipc")
    E("v_lshrrev_b32 v16, 4, v0")
    E("v_bfe_u32 v17, v0, 2, 2")
    E("v_and_b32 v18, 3, v0")
    E("v_lshlrev_b32 v19, 10, v16")
    E("v_lshl_add_u32 v19, v17, 8, v19")
    E("v_lshl_add_u32 v19, v18, 4, v19")
    E("v_lshlrev_b32 v20, 3, v18")
    for w in range(4):
        E("ds_read_b128 v[%d:%d], v19 offset:%d" % (32 + 4 * w, 35 + 4 * w, LDS_ACC + w * 8192))
    for w in range(4):
        E("ds_read_b64 v[%d:%d], v20 offset:%d" % (48 + 2 * w, 49 + 2 * w, LDS_ML + w * 512))
    E("s_waitcnt lgkmcnt(0)")
    E("v_max3_f32 v56, v48, v50, v52")
    E("v_max_f32 v56, v56, v54")
    for w in range(4):
        E("v_sub_f32 v%d, v%d, v56" % (58 + w, 48 + 2 * w))
        E("v_mul_f32 v%d, s46, v%d" % (58 + w, 58 + w))
        E("v_exp_f32 v%d, v%d" % (58 + w, 58 + w))
    E("s_nop 0")
    E("v_mul_f32 v57, v58, v49")
    for w in range(1, 4):
        E("v_fmac_f32 v57, v%d, v%d" % (58 + w, 49 + 2 * w))
    for r in range(4):
        E("v_mul_f32 v%d, v58, v%d" % (64 + r, 32 + r))
        for w in range(1, 4):
            E("v_fmac_f32 v%d, v%d, v%d" % (64 + r, 58 + w, 32 + 4 * w + r))
    E("s_lshl_b32 s41, s2, 11")
    E("s_add_u32 s41, s41, 0x%x" % WS_O)
    E("v_lshlrev_b32 v21, 9, v18")
    E("v_lshl_add_u32 v21, v16, 6, v21")
    E("v_lshl_add_u32 v21, v17, 4, v21")
    E("buffer_store_dwordx4 v[64:67], v21, s[28:31], s41 offen sc1")
    E("v_cmp_gt_u32 vcc, 4, v0")
    E("s_and_b64 exec, exec, vcc")
    E("s_lshl_b32 s41, s2, 5")
    E("s_add_u32 s41, s41, 0x%x" % WS_ML)
    E("buffer_store_dwordx2 v[56:57], v20, s[28:31], s41 offen sc1")
    L("L_skipc")
    E("s_mov_b64 exec, s[50:51]")
    E("s_waitcnt vmcnt(0)")
    E("s_barrier")
    E("s_cmp_lg_u32 s14, 0")
    E("s_cbranch_scc1 L_nopoll")
    E("s_lshl_b32 s41, s16, 2")
    E("s_add_u32 s41, s41, %d" % DBG_P)
    E("v_cmp_eq_u32 vcc, 0, v0")
    E("s_and_saveexec_b64 s[50:51], vcc")
    E("v_mov_b32 v7, s41")
    E("v_mov_b32 v14, 1")
    E("buffer_atomic_add v14, v7, s[36:39], 0 offen sc1")
    E("s_mov_b64 exec, s[50:51]")
    poll("L_pollP", "s41", 32, 7, 14)
    L("L_nopoll")
    E("s_barrier")
    E("s_lshl_b32 s40, s52, 8")
    E("s_add_u32 s40, s40, s16")
    E("v_and_b32 v16, 31, v0")
    E("v_lshlrev_b32 v17, 8, v16")
    E("s_lshl_b32 s41, s40, 5")
    E("s_lshl_b32 s42, s53, 3")
    E("s_add_u32 s41, s41, s42")
    E("s_add_u32 s41, s41, 0x%x" % WS_ML)
    E("v_lshrrev_b32 v18, 5, v0")
    E("v_lshlrev_b32 v19, 16, v18")
    E("v_lshl_add_u32 v19, v16, 4, v19")
    E("s_lshl_b32 s84, s40, 11")
    E("s_lshl_b32 s42, s53, 9")
    E("s_add_u32 s84, s84, s42")
    E("s_add_u32 s84, s84, 0x%x" % WS_O)
    for u in range(1, 4):
        E("s_add_u32 s%d, s84, 0x%x" % (84 + u, u * 16384))
    E("buffer_load_dwordx2 v[20:21], v17, s[28:31], s41 offen sc1")
    for u in range(4):
        E("buffer_load_dwordx4 v[%d:%d], v19, s[28:31], s%d offen sc1" % (32 + 4 * u, 35 + 4 * u, 84 + u))
    E("s_waitcnt vmcnt(4)")
    E("v_mov_b32 v22, v20")
    for sh in (1, 2, 4, 8):
        E("s_nop 1")
        E("v_max_f32_dpp v22, v22, v22 row_ror:%d row_mask:0xf bank_mask:0xf" % sh)
    E("v_mov_b32 v23, v22")
    E("s_nop 1")
    E("v_permlane16_swap_b32 v22, v23")
    E("v_max_f32 v22, v22, v23")
    E("v_sub_f32 v20, v20, v22")
    E("v_mul_f32 v20, s46, v20")
    E("v_exp_f32 v20, v20")
    E("s_nop 0")
    E("v_mul_f32 v21, v20, v21")
    for sh in (1, 2, 4, 8):
        E("s_nop 1")
        E("v_add_f32_dpp v21, v21, v21 row_ror:%d row_mask:0xf bank_mask:0xf" % sh)
    E("v_mov_b32 v23, v21")
    E("s_nop 1")
    E("v_permlane16_swap_b32 v21, v23")
    E("v_add_f32 v21, v21, v23")
    E("v_rcp_f32 v21, v21")
    E("v_lshlrev_b32 v24, 4, v18")
    for u in range(4):
        E("v_add_u32 v23, %d, v24" % (4 * u))
        E("ds_bpermute_b32 v%d, v23, v20" % (64 + u))
    E("s_waitcnt vmcnt(0) lgkmcnt(0)")
    for r in range(4):
        E("v_mul_f32 v%d, v64, v%d" % (68 + r, 32 + r))
        for u in range(1, 4):
            E("v_fmac_f32 v%d, v%d, v%d" % (68 + r, 64 + u, 32 + 4 * u + r))
    for r in range(4):
        E("v_mov_b32 v%d, v%d" % (72 + r, 68 + r))
    E("s_nop 1")
    for r in range(4):
        E("v_permlane32_swap_b32 v%d, v%d" % (68 + r, 72 + r))
    for r in range(4):
        E("v_add_f32 v%d, v%d, v%d" % (68 + r, 68 + r, 72 + r))
    E("v_lshlrev_b32 v23, 9, v1")
    E("v_lshl_add_u32 v23, v16, 4, v23")
    E("ds_write_b128 v23, v[68:71] offset:%d" % LDS_T1)
    E("s_waitcnt lgkmcnt(0)")
    E("s_barrier")
    E("v_lshrrev_b32 v25, 4, v0")
    E("v_cmp_gt_u32 vcc, 128, v0")
    E("s_and_saveexec_b64 s[50:51], vcc")
    E("v_lshlrev_b32 v23, 2, v0")
    for w in range(4):
        E("ds_read_b32 v%d, v23 offset:%d" % (68 + w, LDS_T1 + w * 512))
    E("s_waitcnt lgkmcnt(0)")
    E("v_add_f32 v68, v68, v69")
    E("v_add_f32 v70, v70, v71")
    E("v_add_f32 v68, v68, v70")
    E("v_mul_f32 v68, v68, v21")
    E("v_cvt_pk_bf16_f32 v68, v68, v68")
    E("v_lshlrev_b32 v68, 16, v68")
    E("v_lshlrev_b32 v69, 3, v3")
    E("v_add_u32 v69, v69, v25")
    E("v_lshlrev_b32 v69, 2, v69")
    E("ds_write_b32 v69, v68 offset:%d" % LDS_TO)
    E("s_mov_b64 exec, s[50:51]")
    E("s_waitcnt lgkmcnt(0)")
    E("s_barrier")
    E("v_lshlrev_b32 v23, 5, v25")
    E("ds_read_b128 v[64:67], v23 offset:%d" % LDS_TO)
    E("ds_read_b128 v[68:71], v23 offset:%d" % (LDS_TO + 16))
    for k in range(8):
        E("v_mov_b32 v%d, 0" % (72 + k))
    E("s_waitcnt lgkmcnt(0)")
    for ii in range(8):
        for u in range(4):
            src = WREG + 4 * ii + u
            E("v_lshlrev_b32 v80, 16, v%d" % src)
            E("v_and_b32 v81, 0xffff0000, v%d" % src)
            E("v_fmac_f32 v%d, v%d, v80" % (72 + 2 * u, 64 + ii))
            E("v_fmac_f32 v%d, v%d, v81" % (73 + 2 * u, 64 + ii))
    for k in range(8):
        E("v_mov_b32 v%d, v%d" % (80 + k, 72 + k))
    E("s_nop 1")
    for k in range(8):
        E("v_permlane16_swap_b32 v%d, v%d" % (72 + k, 80 + k))
    for k in range(8):
        E("v_add_f32 v%d, v%d, v%d" % (72 + k, 72 + k, 80 + k))
    for k in range(8):
        E("v_mov_b32 v%d, v%d" % (80 + k, 72 + k))
    E("s_nop 1")
    for k in range(8):
        E("v_permlane32_swap_b32 v%d, v%d" % (72 + k, 80 + k))
    for k in range(8):
        E("v_add_f32 v%d, v%d, v%d" % (72 + k, 72 + k, 80 + k))
    E("v_lshlrev_b32 v23, 9, v1")
    E("v_lshl_add_u32 v23, v3, 5, v23")
    E("ds_write_b128 v23, v[72:75] offset:%d" % LDS_T3)
    E("ds_write_b128 v23, v[76:79] offset:%d" % (LDS_T3 + 16))
    E("s_waitcnt lgkmcnt(0)")
    E("s_barrier")
    E("s_lshl_b32 s40, s52, 2")
    E("s_add_u32 s40, s40, s54")
    E("s_lshl_b32 s41, s40, 14")
    E("s_add_u32 s41, s41, 0x%x" % WS_OP)
    E("s_lshl_b32 s42, s55, 9")
    E("s_add_u32 s42, s42, s41")
    E("v_cmp_gt_u32 vcc, 128, v0")
    E("s_and_saveexec_b64 s[50:51], vcc")
    E("v_lshlrev_b32 v23, 2, v0")
    for w in range(4):
        E("ds_read_b32 v%d, v23 offset:%d" % (68 + w, LDS_T3 + w * 512))
    E("s_waitcnt lgkmcnt(0)")
    E("v_add_f32 v68, v68, v69")
    E("v_add_f32 v70, v70, v71")
    E("v_add_f32 v68, v68, v70")
    E("buffer_store_dword v68, v23, s[28:31], s42 offen sc1")
    E("s_mov_b64 exec, s[50:51]")
    E("s_waitcnt vmcnt(0)")
    E("s_barrier")
    E("v_cmp_eq_u32 vcc, 0, v0")
    E("s_and_saveexec_b64 s[50:51], vcc")
    E("s_lshl_b32 s43, s40, 2")
    E("s_add_u32 s43, s43, %d" % DBG_O)
    E("v_mov_b32 v23, s43")
    E("v_mov_b32 v68, 1")
    E("buffer_atomic_add v68, v23, s[36:39], 0 offen sc0 sc1")
    E("s_waitcnt vmcnt(0)")
    E("v_mov_b32 v23, 0")
    E("ds_write_b32 v23, v68 offset:%d" % LDS_FL)
    E("s_mov_b64 exec, s[50:51]")
    E("s_waitcnt lgkmcnt(0)")
    E("s_barrier")
    E("v_mov_b32 v23, 0")
    E("ds_read_b32 v68, v23 offset:%d" % LDS_FL)
    E("s_waitcnt lgkmcnt(0)")
    E("v_readfirstlane_b32 s43, v68")
    E("s_cmp_lg_u32 s43, 31")
    E("s_cbranch_scc1 L_end")
    E("v_and_b32 v23, 127, v0")
    E("v_lshrrev_b32 v24, 7, v0")
    E("v_lshlrev_b32 v25, 13, v24")
    E("v_lshl_add_u32 v25, v23, 2, v25")
    E("s_add_u32 s42, s41, 4096")
    for i in range(16):
        E("buffer_load_dword v%d, v25, s[28:31], s%d offen offset:%d sc1" % (32 + i, 41 if i < 8 else 42, (i & 7) * 512))
    E("s_waitcnt vmcnt(0)")
    for i in range(1, 16):
        E("v_add_f32 v32, v32, v%d" % (32 + i))
    E("v_lshlrev_b32 v25, 2, v0")
    E("ds_write_b32 v25, v32 offset:%d" % LDS_T4)
    E("s_waitcnt lgkmcnt(0)")
    E("s_barrier")
    E("v_cmp_gt_u32 vcc, 128, v0")
    E("s_and_saveexec_b64 s[50:51], vcc")
    E("s_cbranch_execz L_end")
    E("ds_read_b32 v33, v25 offset:%d" % (LDS_T4 + 512))
    E("s_waitcnt lgkmcnt(0)")
    E("v_add_f32 v32, v32, v33")
    E("v_cvt_pk_bf16_f32 v32, v32, v32")
    E("s_lshl_b32 s43, s40, 8")
    E("v_lshlrev_b32 v25, 1, v0")
    E("buffer_store_short v32, v25, s[72:75], s43 offen")
    E("s_endpgm")
    L("L_waveB")
    E("s_mov_b64 s[20:21], s[64:65]")
    E("s_mov_b64 s[24:25], s[66:67]")
    srd(20, 0x4000000)
    srd(24, 0x4000000)
    E("s_lshl_b32 s40, s16, 23")
    E("s_lshl_b32 s41, s17, 15")
    E("s_add_u32 s40, s40, s41")
    E("s_add_u32 s40, s40, 0x%x" % (28672 * 256))
    init_state()
    E("s_barrier")
    E("v_cmp_gt_u32 vcc, 32, v2")
    E("s_and_saveexec_b64 s[50:51], vcc")
    E("v_lshlrev_b32 v7, 2, v2")
    for r in range(16):
        E("ds_read_b32 v%d, v7 offset:%d" % (64 + r, LDS_QP + r * 128))
    E("s_waitcnt lgkmcnt(0)")
    for r in range(1, 16):
        E("v_add_f32 v64, v64, v%d" % (64 + r))
    E("v_cvt_pk_bf16_f32 v64, v64, v64")
    E("s_lshl_b32 s41, s15, 13")
    E("s_lshl_b32 s42, s18, 6")
    E("s_add_u32 s41, s41, s42")
    E("v_lshlrev_b32 v7, 1, v2")
    E("buffer_store_short v64, v7, s[28:31], s41 offen offset:%d sc1" % WS_Q)
    E("s_mov_b64 exec, s[50:51]")
    E("s_waitcnt vmcnt(0)")
    E("s_lshl_b32 s41, s15, 3")
    E("s_add_u32 s41, s41, s16")
    E("s_lshl_b32 s41, s41, 2")
    E("s_add_u32 s41, s41, %d" % DBG_Q)
    E("v_cmp_eq_u32 vcc, 0, v2")
    E("s_and_saveexec_b64 s[50:51], vcc")
    E("v_mov_b32 v7, s41")
    E("v_mov_b32 v8, 1")
    E("buffer_atomic_add v8, v7, s[36:39], 0 offen sc1")
    E("s_mov_b64 exec, s[50:51]")
    E("s_lshl_b32 s41, s16, 2")
    E("s_add_u32 s42, s41, %d" % (DBG_Q + 32))
    poll("L_pollQA", "s41", 16)
    poll("L_pollQB", "s42", 16)
    E("v_lshlrev_b32 v7, 4, v2")
    E("s_lshl_b32 s41, s16, 10")
    E("s_add_u32 s42, s41, 8192")
    E("buffer_load_dwordx4 v[64:67], v7, s[28:31], s41 offen offset:%d sc1" % WS_Q)
    E("buffer_load_dwordx4 v[68:71], v7, s[28:31], s42 offen offset:%d sc1" % WS_Q)
    E("s_waitcnt vmcnt(0)")
    E("ds_write_b128 v7, v[64:67] offset:%d" % LDS_Q)
    E("ds_write_b128 v7, v[68:71] offset:%d" % (LDS_Q + 1024))
    for h in range(NSLOT):
        issue(h)
    E("s_waitcnt lgkmcnt(0)")
    E("s_barrier")
    read_q(1)
    main_loop(4, "b", False)
    E("s_lshl_b32 s41, s2, 11")
    E("s_add_u32 s41, s41, 0x%x" % (WS_O + 256 * 2048))
    E("v_lshlrev_b32 v7, 9, v3")
    E("v_lshl_add_u32 v7, v4, 4, v7")
    E("v_cmp_gt_u32 vcc, 4, v3")
    E("s_and_saveexec_b64 s[50:51], vcc")
    for i in range(8):
        E("buffer_store_dwordx4 v[%d:%d], v7, s[28:31], s41 offen offset:%d sc1" % (ACC + 4 * i, ACC + 4 * i + 3, i * 64))
    E("v_cmp_gt_u32 vcc, 4, v2")
    E("s_and_b64 exec, exec, vcc")
    E("s_lshl_b32 s41, s2, 5")
    E("s_add_u32 s41, s41, 0x%x" % (WS_ML + 256 * 32))
    E("v_lshlrev_b32 v7, 3, v2")
    E("buffer_store_dwordx2 v[%d:%d], v7, s[28:31], s41 offen sc1" % (MT, TMP))
    E("s_mov_b64 exec, s[50:51]")
    E("s_waitcnt vmcnt(0)")
    E("s_barrier")
    L("L_end")
    E("s_endpgm")

def main():
    global NT, NTW
    opts = sys.argv[2:]
    if 'nont' in opts: NT = ""
    if 'ntw' in opts: NTW = " nt"
    out.append(HEADER.rstrip())
    out.append("; @launch grid=(256,1,1) block=(320,1,1) lds=%d" % LDS_TOTAL)
    out.append('.amdgcn_target "amdgcn-amd-amdhsa--gfx950"')
    out.append(".text")
    gen()
    out.append('.section .rodata,"a"')
    out.append(".p2align 6")
    out.append(""".amdhsa_kernel %s
  .amdhsa_next_free_vgpr 256
  .amdhsa_next_free_sgpr 102
  .amdhsa_accum_offset 256
  .amdhsa_group_segment_fixed_size 0
  .amdhsa_kernarg_size 104
  .amdhsa_user_sgpr_count 2
  .amdhsa_user_sgpr_kernarg_segment_ptr 1
  .amdhsa_system_sgpr_workgroup_id_x 1
.end_amdhsa_kernel
""" % KN)
    open(sys.argv[1], 'w').write("\n".join(out) + "\n")
main()
```

```python
import struct, sys

NAME = "concat_heads__gqa_block_cached__sliding_block_cached__decode"
WS_Q = 0x0
WS_ML = 0x10000
WS_O = 0x20000
WS_OP = 0x200000
WS_SIZE = 0x400000
CS = (128.0 ** -0.5) * 1.4426950408889634
def f32bits(x): return struct.unpack('<I', struct.pack('<f', x))[0]
CS_BITS = f32bits(CS)
NEGBIG = f32bits(-1.0e30)

out = []
def E(s): out.append("    " + s)
def L(s): out.append(s + ":")
def C(s): out.append("    ; " + s)
HEADER = open('cdna_kernels/%s.s.ref' % NAME).read().split('; Override launch')[0]

def srd(s, size):
    E("s_mov_b32 s%d, 0x%x" % (s + 2, size))
    E("s_mov_b32 s%d, 0x00020000" % (s + 3))

OPT = dict(nt=1, ntw=0, stamp=0, pf=2, sl1=2, sl2=1, sl3=1)
LDS_ACC = 0
LDS_ML = 32768
LDS_T1 = 36864
LDS_TO = 38912
LDS_T3 = 40960
LDS_T4 = 43008
LDS_TOTAL = 45056

Q = 16; ACC = 32; S0 = 64; S1 = 68; P = 72; T = 76; SLOT = 96
M = 9; LS = 10; NMC = 11; MT = 12; TMP = 13; MT2 = 14; AL = 15
NSLOT = 5
WREG = SLOT + 32 * 1

def kbegin(name):
    out.append(".globl %s" % name)
    out.append(".p2align 8")
    out.append(".type %s,@function" % name)
    out.append("%s:" % name)

def kd(name, vgpr, sgpr=102):
    return """.p2align 6
.amdhsa_kernel %s
  .amdhsa_next_free_vgpr %d
  .amdhsa_next_free_sgpr %d
  .amdhsa_accum_offset %d
  .amdhsa_group_segment_fixed_size 0
  .amdhsa_kernarg_size 104
  .amdhsa_user_sgpr_count 2
  .amdhsa_user_sgpr_kernarg_segment_ptr 1
  .amdhsa_system_sgpr_workgroup_id_x 1
.end_amdhsa_kernel
""" % (name, vgpr, sgpr, (vgpr + 3) // 4 * 4)

def stamp(idx):
    if not OPT['stamp']: return
    E("s_memrealtime s[92:93]")
    E("s_waitcnt lgkmcnt(0)")
    E("v_writelane_b32 v92, s92, %d" % idx)
def stamp_flush():
    if not OPT['stamp']: return
    E("s_mov_b64 exec, -1")
    E("s_mul_i32 s92, s2, 5")
    E("s_add_u32 s92, s92, s14")
    E("s_lshl_b32 s92, s92, 8")
    E("s_add_u32 s92, s92, 0x300000")
    E("v_lshlrev_b32 v93, 2, v2")
    E("buffer_store_dword v92, v93, s[28:31], s92 offen")

def roles():
    E("s_and_b32 s16, s2, 7")
    E("s_lshr_b32 s17, s2, 3")
    E("s_lshr_b32 s52, s17, 4")
    E("s_lshr_b32 s53, s17, 2")
    E("s_and_b32 s53, s53, 3")
    E("s_and_b32 s54, s17, 3")
    E("s_lshl_b32 s55, s16, 2")
    E("s_add_u32 s55, s55, s53")

def gen_pre():
    kbegin("pre_kernel")
    E("s_cmp_ge_u32 s2, 256")
    E("s_cbranch_scc1 L_p_end")
    E("s_load_dwordx2 s[4:5], s[0:1], 0")
    E("s_load_dwordx2 s[20:21], s[0:1], 8")
    E("s_load_dwordx2 s[24:25], s[0:1], 16")
    E("s_load_dwordx2 s[10:11], s[0:1], 24")
    E("s_load_dwordx2 s[62:63], s[0:1], 40")
    E("s_load_dwordx2 s[68:69], s[0:1], 64")
    E("s_load_dwordx2 s[28:29], s[0:1], 96")
    E("v_lshrrev_b32 v1, 6, v0")
    E("v_and_b32 v2, 63, v0")
    E("v_readfirstlane_b32 s14, v1")
    roles()
    E("s_lshr_b32 s15, s2, 7")
    E("s_lshl_b32 s18, s16, 4")
    E("s_and_b32 s19, s17, 15")
    E("s_or_b32 s18, s18, s19")
    E("v_and_b32 v10, 3, v0")
    E("v_lshrrev_b32 v11, 2, v0")
    E("v_lshlrev_b32 v12, 13, v11")
    E("v_lshl_add_u32 v12, v10, 4, v12")
    E("v_lshlrev_b32 v13, 1, v11")
    E("v_lshlrev_b32 v7, 4, v2")
    E("s_lshl_b32 s41, s18, 6")
    for i in range(8):
        E("s_add_u32 s%d, s41, 0x%x" % (84 + i, i * 0x80000))
    E("s_waitcnt lgkmcnt(0)")
    E("s_cmp_eq_u32 s15, 0")
    E("s_cselect_b64 s[76:77], s[4:5], s[62:63]")
    E("s_cselect_b64 s[80:81], s[10:11], s[68:69]")
    srd(76, 1024)
    srd(80, 0x400000)
    srd(28, WS_SIZE)
    srd(20, 0x4000000)
    srd(24, 0x4000000)
    ntw = " nt" if OPT['ntw'] else ""
    for i in range(8):
        E("buffer_load_dwordx4 v[%d:%d], v12, s[80:83], s%d offen%s" % (32 + 4 * i, 35 + 4 * i, 84 + i, ntw))
    for i in range(8):
        E("buffer_load_ushort v%d, v13, s[76:79], 0 offen offset:%d" % (64 + i, i * 128))
    E("s_lshl_b32 s40, s16, 23")
    E("s_lshl_b32 s41, s17, 18")
    E("s_add_u32 s40, s40, s41")
    E("s_lshl_b32 s41, s14, 16")
    E("s_add_u32 s40, s40, s41")
    pf = OPT['pf']
    for h in range(pf):
        n = h // 2
        E("s_add_u32 s48, s40, 0x%x" % (n * 8192))
        E("s_add_u32 s49, s40, 0x%x" % (n * 8192 + 4096))
        for t in range(2):
            for j in range(4):
                r = 96 + (t * 4 + j) * 4
                E("buffer_load_dwordx4 v[%d:%d], v7, s[%d:%d], s%d offen offset:%d" % (r, r + 3, 20 + 4 * (h & 1), 23 + 4 * (h & 1), 48 + t, j * 1024))
    for k in range(4):
        E("v_mov_b32 v%d, -1" % (88 + k))
    E("s_lshl_b32 s41, s2, 11")
    E("s_add_u32 s41, s41, 0x%x" % WS_O)
    E("s_cmp_eq_u32 s14, 1")
    E("s_cselect_b32 s42, 0x%x, 0" % (256 * 2048))
    E("s_add_u32 s41, s41, s42")
    E("s_cmp_gt_u32 s14, 1")
    E("s_cbranch_scc1 L_p_c2")
    E("buffer_store_dwordx4 v[88:91], v7, s[28:31], s41 offen")
    E("buffer_store_dwordx4 v[88:91], v7, s[28:31], s41 offen offset:1024")
    E("s_branch L_p_c3")
    L("L_p_c2")
    E("s_cmp_lg_u32 s14, 2")
    E("s_cbranch_scc1 L_p_c3")
    E("s_lshl_b32 s41, s52, 2")
    E("s_add_u32 s41, s41, s54")
    E("s_lshl_b32 s41, s41, 5")
    E("s_add_u32 s41, s41, s55")
    E("s_lshl_b32 s41, s41, 9")
    E("s_add_u32 s41, s41, 0x%x" % WS_OP)
    E("v_cmp_gt_u32 vcc, 32, v2")
    E("s_and_saveexec_b64 s[50:51], vcc")
    E("buffer_store_dwordx4 v[88:91], v7, s[28:31], s41 offen")
    E("v_cmp_gt_u32 vcc, 2, v2")
    E("s_and_b64 exec, exec, vcc")
    E("s_lshl_b32 s41, s2, 7")
    E("s_add_u32 s41, s41, 0x%x" % WS_ML)
    E("s_add_u32 s42, s41, 0x%x" % (256 * 128))
    E("buffer_store_dwordx4 v[88:91], v7, s[28:31], s41 offen")
    E("buffer_store_dwordx4 v[88:91], v7, s[28:31], s42 offen")
    E("s_mov_b64 exec, s[50:51]")
    L("L_p_c3")
    for k in range(8):
        E("v_mov_b32 v%d, 0" % (72 + k))
    E("s_waitcnt vmcnt(%d)" % (8 * pf))
    for i in range(8):
        E("v_lshlrev_b32 v%d, 16, v%d" % (64 + i, 64 + i))
    for i in range(8):
        for u in range(4):
            src = 32 + 4 * i + u
            E("v_lshlrev_b32 v80, 16, v%d" % src)
            E("v_and_b32 v81, 0xffff0000, v%d" % src)
            E("v_fmac_f32 v%d, v%d, v80" % (72 + 2 * u, 64 + i))
            E("v_fmac_f32 v%d, v%d, v81" % (73 + 2 * u, 64 + i))
    E("s_nop 1")
    for k in range(8):
        E("v_add_f32_dpp v%d, v%d, v%d row_ror:4 row_mask:0xf bank_mask:0xf" % (80 + k, 72 + k, 72 + k))
    E("s_nop 1")
    for k in range(8):
        E("v_add_f32_dpp v%d, v%d, v%d row_ror:8 row_mask:0xf bank_mask:0xf" % (72 + k, 80 + k, 80 + k))
    E("v_lshrrev_b32 v14, 4, v0")
    E("v_lshlrev_b32 v14, 7, v14")
    E("v_lshl_add_u32 v14, v10, 5, v14")
    E("v_and_b32 v3, 15, v0")
    E("v_cmp_gt_u32 vcc, 4, v3")
    E("s_and_saveexec_b64 s[50:51], vcc")
    E("ds_write_b128 v14, v[72:75]")
    E("ds_write_b128 v14, v[76:79] offset:16")
    E("s_mov_b64 exec, s[50:51]")
    E("s_waitcnt lgkmcnt(0)")
    E("s_barrier")
    E("v_cmp_gt_u32 vcc, 32, v0")
    E("s_and_saveexec_b64 s[50:51], vcc")
    E("s_cbranch_execz L_p_end")
    E("v_lshlrev_b32 v5, 2, v0")
    for r in range(16):
        E("ds_read_b32 v%d, v5 offset:%d" % (32 + r, r * 128))
    E("s_waitcnt lgkmcnt(0)")
    for r in range(1, 16):
        E("v_add_f32 v32, v32, v%d" % (32 + r))
    E("v_cvt_pk_bf16_f32 v32, v32, v32")
    E("s_lshl_b32 s41, s15, 13")
    E("s_lshl_b32 s42, s18, 6")
    E("s_add_u32 s41, s41, s42")
    E("v_lshlrev_b32 v5, 1, v0")
    E("buffer_store_short v32, v5, s[28:31], s41 offen offset:%d" % WS_Q)
    L("L_p_end")
    E("s_endpgm")

def issue(h):
    NT = " nt" if OPT['nt'] else ""
    n = h // 2
    base = SLOT + 32 * (h % NSLOT)
    E("s_add_u32 s48, s40, 0x%x" % (n * 8192))
    E("s_add_u32 s49, s40, 0x%x" % (n * 8192 + 4096))
    if h % 2 == 0:
        for t in range(2):
            for j in range(4):
                r = base + (t * 4 + j) * 4
                E("buffer_load_dwordx4 v[%d:%d], v5, s[20:23], s%d offen offset:%d%s" % (r, r + 3, 48 + t, j * 64, NT))
    else:
        for t in range(2):
            for rr in range(4):
                r = base + (t * 4 + rr) * 4
                E("buffer_load_dwordx4 v[%d:%d], v6, s[24:27], s%d offen offset:%d%s" % (r, r + 3, 48 + t, rr * 256, NT))

def main_loop(ntiles, tag, wo_prefetch):
    NH = 2 * ntiles
    extra = 0
    ntw = " nt" if OPT['ntw'] else ""
    for n in range(ntiles):
        C("---- tile %d" % n)
        h = 2 * n
        base = SLOT + 32 * (h % NSLOT)
        issued = min(NH, h + NSLOT)
        E("s_waitcnt vmcnt(%d)" % (8 * (issued - h - 1) + extra))
        for j in range(4):
            for t in range(2):
                r = base + (t * 4 + j) * 4
                S = S0 if t == 0 else S1
                c = "0" if j == 0 else "v[%d:%d]" % (S, S + 3)
                E("v_mfma_f32_16x16x32_bf16 v[%d:%d], v[%d:%d], v[%d:%d], %s" % (S, S + 3, r, r + 3, Q + 4 * j, Q + 4 * j + 3, c))
        if h + NSLOT < NH:
            issue(h + NSLOT)
        else:
            E("s_nop 7")
            E("s_nop 1")
        E("v_max3_f32 v%d, v%d, v%d, v%d" % (MT, S0, S0 + 1, S0 + 2))
        E("v_max3_f32 v%d, v%d, v%d, v%d" % (MT2, S0 + 3, S1, S1 + 1))
        E("v_max3_f32 v%d, v%d, v%d, v%d" % (MT, MT, S1 + 2, S1 + 3))
        E("v_max_f32 v%d, v%d, v%d" % (MT, MT, MT2))
        E("v_mov_b32 v%d, v%d" % (TMP, MT))
        E("s_nop 1")
        E("v_permlane32_swap_b32 v%d, v%d" % (MT, TMP))
        E("v_max_f32 v%d, v%d, v%d" % (MT, MT, TMP))
        E("v_mov_b32 v%d, v%d" % (TMP, MT))
        E("s_nop 1")
        E("v_permlane16_swap_b32 v%d, v%d" % (MT, TMP))
        E("v_max3_f32 v%d, v%d, v%d, v%d" % (MT, MT, TMP, M))
        E("v_cmp_gt_f32 vcc, v%d, v%d" % (MT, M))
        E("s_cbranch_vccz L_nors_%s_%d" % (tag, n))
        E("v_sub_f32 v%d, v%d, v%d" % (AL, M, MT))
        E("v_mul_f32 v%d, s46, v%d" % (AL, AL))
        E("v_exp_f32 v%d, v%d" % (AL, AL))
        E("s_nop 0")
        E("v_mul_f32 v%d, v%d, v%d" % (LS, LS, AL))
        for k in range(32):
            E("v_mul_f32 v%d, v%d, v%d" % (ACC + k, ACC + k, AL))
        L("L_nors_%s_%d" % (tag, n))
        E("v_mov_b32 v%d, v%d" % (M, MT))
        E("v_mul_f32 v%d, s46, v%d" % (NMC, MT))
        for k in range(8):
            E("v_fma_f32 v%d, v%d, s46, -v%d" % (S0 + k, S0 + k, NMC))
        for k in range(8):
            E("v_exp_f32 v%d, v%d" % (S0 + k, S0 + k))
        E("s_nop 0")
        for w in range(4):
            E("v_cvt_pk_bf16_f32 v%d, v%d, v%d" % (P + w, S0 + 2 * w, S0 + 2 * w + 1))
        for k in range(8):
            E("v_add_f32 v%d, v%d, v%d" % (LS, LS, S0 + k))
        h = 2 * n + 1
        base = SLOT + 32 * (h % NSLOT)
        issued = min(NH, h + NSLOT)
        E("s_waitcnt vmcnt(%d)" % (8 * (issued - h - 1) + extra))
        def perms(u):
            tb = T + 8 * (u & 1)
            for w in range(4):
                a = base + (2 * w) * 4 + u
                b = base + (2 * w + 1) * 4 + u
                E("v_perm_b32 v%d, v%d, v%d, s44" % (tb + w, b, a))
            for w in range(4):
                a = base + (2 * w) * 4 + u
                b = base + (2 * w + 1) * 4 + u
                E("v_perm_b32 v%d, v%d, v%d, s45" % (tb + 4 + w, b, a))
        def mf(u):
            tb = T + 8 * (u & 1)
            for x in range(2):
                i = 2 * u + x
                E("v_mfma_f32_16x16x32_bf16 v[%d:%d], v[%d:%d], v[%d:%d], v[%d:%d]" % (ACC + 4 * i, ACC + 4 * i + 3, tb + 4 * x, tb + 4 * x + 3, P, P + 3, ACC + 4 * i, ACC + 4 * i + 3))
        perms(0); perms(1); mf(0); perms(2); mf(1); perms(3)
        if h + NSLOT < NH:
            issue(h + NSLOT)
        elif wo_prefetch and h == 11:
            C("wo slice prefetch")
            for ii in range(8):
                E("buffer_load_dwordx4 v[%d:%d], v8, s[32:35], s%d offen offset:%d%s" % (WREG + 4 * ii, WREG + 4 * ii + 3, 56 + (ii >> 2), (ii & 3) * 1024, ntw))
            extra = 8
        mf(2)
        E("s_nop 1")
        mf(3)
    E("v_mov_b32 v%d, v%d" % (TMP, LS))
    E("s_nop 1")
    E("v_permlane32_swap_b32 v%d, v%d" % (LS, TMP))
    E("v_add_f32 v%d, v%d, v%d" % (LS, LS, TMP))
    E("v_mov_b32 v%d, v%d" % (TMP, LS))
    E("s_nop 1")
    E("v_permlane16_swap_b32 v%d, v%d" % (LS, TMP))
    E("v_add_f32 v%d, v%d, v%d" % (LS, LS, TMP))
    E("v_mov_b32 v%d, v%d" % (MT, M))
    E("v_mov_b32 v%d, v%d" % (TMP, LS))

def init_state():
    for k in range(32):
        E("v_mov_b32 v%d, 0" % (ACC + k))
    E("v_mov_b32 v%d, 0x%08x" % (M, NEGBIG))
    E("v_mov_b32 v%d, 0" % LS)

def spin(label, sleep):
    E("s_cbranch_vccz %s_done" % label)
    E("s_add_u32 s60, s60, 1")
    E("s_cmp_lt_u32 s60, 0x40000")
    E("s_cbranch_scc0 %s_done" % label)
    E("s_sleep %d" % sleep)
    E("s_branch %s" % label)
    L(label + "_done")

def gen_main():
    kbegin("main_kernel")
    E("s_cmp_ge_u32 s2, 256")
    E("s_cbranch_scc1 L_end")
    E("s_load_dwordx2 s[6:7], s[0:1], 8")
    E("s_load_dwordx2 s[8:9], s[0:1], 16")
    E("s_load_dwordx2 s[12:13], s[0:1], 32")
    E("s_load_dwordx2 s[64:65], s[0:1], 48")
    E("s_load_dwordx2 s[66:67], s[0:1], 56")
    E("s_load_dwordx2 s[70:71], s[0:1], 72")
    E("s_load_dwordx2 s[72:73], s[0:1], 80")
    E("s_load_dwordx2 s[28:29], s[0:1], 96")
    E("v_lshrrev_b32 v1, 6, v0")
    E("v_and_b32 v2, 63, v0")
    E("v_readfirstlane_b32 s14, v1")
    roles()
    E("s_lshl_b32 s56, s55, 17")
    E("s_lshl_b32 s57, s54, 8")
    E("s_add_u32 s56, s56, s57")
    E("s_add_u32 s57, s56, 4096")
    E("v_and_b32 v3, 15, v2")
    E("v_lshrrev_b32 v4, 4, v2")
    E("v_lshlrev_b32 v5, 8, v3")
    E("v_lshl_add_u32 v5, v4, 4, v5")
    E("v_lshlrev_b32 v6, 10, v4")
    E("v_lshl_add_u32 v6, v3, 4, v6")
    E("s_mov_b32 s44, 0x05040100")
    E("s_mov_b32 s45, 0x07060302")
    E("s_mov_b32 s46, 0x%08x" % CS_BITS)
    E("s_cmp_eq_u32 s14, 4")
    E("s_cselect_b32 s15, 1, 0")
    E("s_lshl_b32 s40, s16, 23")
    E("s_lshl_b32 s41, s17, 18")
    E("s_lshl_b32 s42, s14, 16")
    E("s_add_u32 s41, s41, s42")
    E("s_lshl_b32 s42, s17, 15")
    E("s_add_u32 s42, s42, 0x%x" % (28672 * 256))
    E("s_cmp_eq_u32 s14, 4")
    E("s_cselect_b32 s41, s42, s41")
    E("s_add_u32 s40, s40, s41")
    E("s_lshl_b32 s41, s15, 13")
    E("s_lshl_b32 s42, s16, 10")
    E("s_add_u32 s41, s41, s42")
    E("v_add_u32 v7, s41, v5")
    E("v_mov_b32 v8, 0x80000000")
    E("v_cmp_gt_u32 vcc, 4, v3")
    E("s_nop 1")
    E("v_cndmask_b32 v7, v8, v7, vcc")
    E("v_lshrrev_b32 v8, 4, v0")
    E("v_lshlrev_b32 v8, 13, v8")
    E("v_lshl_add_u32 v8, v3, 4, v8")
    E("s_waitcnt lgkmcnt(0)")
    srd(28, WS_SIZE)
    srd(72, 2048)
    E("s_cmp_eq_u32 s52, 0")
    E("s_cselect_b64 s[32:33], s[12:13], s[70:71]")
    srd(32, 0x400000)
    E("s_cmp_eq_u32 s14, 4")
    E("s_cselect_b64 s[20:21], s[64:65], s[6:7]")
    E("s_cselect_b64 s[24:25], s[66:67], s[8:9]")
    srd(20, 0x4000000)
    srd(24, 0x4000000)
    if OPT['stamp']: E("v_mov_b32 v92, 0")
    stamp(0)
    for j in range(4):
        E("buffer_load_dwordx4 v[%d:%d], v7, s[28:31], 0 offen offset:%d" % (Q + 4 * j, Q + 4 * j + 3, WS_Q + j * 64))
    for h in range(NSLOT):
        issue(h)
    init_state()
    stamp(1)
    E("s_cmp_eq_u32 s14, 4")
    E("s_cbranch_scc1 L_waveB")
    main_loop(8, "a", True)
    stamp(3)
    E("s_lshl_b32 s41, s14, 13")
    E("v_lshlrev_b32 v7, 4, v2")
    E("v_add_u32 v7, s41, v7")
    E("s_lshl_b32 s41, s14, 9")
    E("v_lshlrev_b32 v14, 3, v2")
    E("v_add_u32 v14, s41, v14")
    E("s_nop 2")
    for i in range(8):
        E("ds_write_b128 v7, v[%d:%d] offset:%d" % (ACC + 4 * i, ACC + 4 * i + 3, LDS_ACC + i * 1024))
    E("ds_write_b64 v14, v[%d:%d] offset:%d" % (MT, TMP, LDS_ML))
    E("s_waitcnt lgkmcnt(0)")
    E("s_barrier")
    E("v_cmp_gt_u32 vcc, 128, v0")
    E("s_and_saveexec_b64 s[50:51], vcc")
    E("s_cbranch_execz L_skipc")
    E("v_lshrrev_b32 v16, 4, v0")
    E("v_bfe_u32 v17, v0, 2, 2")
    E("v_and_b32 v18, 3, v0")
    E("v_lshlrev_b32 v19, 10, v16")
    E("v_lshl_add_u32 v19, v17, 8, v19")
    E("v_lshl_add_u32 v19, v18, 4, v19")
    E("v_lshlrev_b32 v20, 3, v18")
    for w in range(4):
        E("ds_read_b128 v[%d:%d], v19 offset:%d" % (32 + 4 * w, 35 + 4 * w, LDS_ACC + w * 8192))
    for w in range(4):
        E("ds_read_b64 v[%d:%d], v20 offset:%d" % (48 + 2 * w, 49 + 2 * w, LDS_ML + w * 512))
    E("s_waitcnt lgkmcnt(0)")
    E("v_max3_f32 v56, v48, v50, v52")
    E("v_max_f32 v56, v56, v54")
    for w in range(4):
        E("v_sub_f32 v%d, v%d, v56" % (58 + w, 48 + 2 * w))
        E("v_mul_f32 v%d, s46, v%d" % (58 + w, 58 + w))
        E("v_exp_f32 v%d, v%d" % (58 + w, 58 + w))
    E("s_nop 0")
    E("v_mul_f32 v57, v58, v49")
    for w in range(1, 4):
        E("v_fmac_f32 v57, v%d, v%d" % (58 + w, 49 + 2 * w))
    for r in range(4):
        E("v_mul_f32 v%d, v58, v%d" % (64 + r, 32 + r))
        for w in range(1, 4):
            E("v_fmac_f32 v%d, v%d, v%d" % (64 + r, 58 + w, 32 + 4 * w + r))
    E("s_lshl_b32 s41, s2, 11")
    E("s_add_u32 s41, s41, 0x%x" % WS_O)
    E("v_lshlrev_b32 v21, 9, v18")
    E("v_lshl_add_u32 v21, v16, 6, v21")
    E("v_lshl_add_u32 v21, v17, 4, v21")
    E("buffer_store_dwordx4 v[64:67], v21, s[28:31], s41 offen sc1")
    E("v_cmp_gt_u32 vcc, 4, v0")
    E("s_and_b64 exec, exec, vcc")
    E("s_lshl_b32 s41, s2, 7")
    E("s_add_u32 s41, s41, 0x%x" % WS_ML)
    E("buffer_store_dwordx2 v[56:57], v20, s[28:31], s41 offen sc1")
    L("L_skipc")
    E("s_mov_b64 exec, s[50:51]")
    stamp(4)
    E("s_lshl_b32 s40, s52, 8")
    E("s_add_u32 s40, s40, s16")
    E("v_and_b32 v16, 31, v0")
    E("v_lshlrev_b32 v17, 10, v16")
    E("s_lshl_b32 s41, s40, 7")
    E("s_lshl_b32 s42, s53, 3")
    E("s_add_u32 s41, s41, s42")
    E("s_add_u32 s41, s41, 0x%x" % WS_ML)
    E("v_lshrrev_b32 v18, 5, v0")
    E("v_lshlrev_b32 v19, 16, v18")
    E("v_lshl_add_u32 v19, v16, 4, v19")
    E("s_lshl_b32 s84, s40, 11")
    E("s_lshl_b32 s42, s53, 9")
    E("s_add_u32 s84, s84, s42")
    E("s_add_u32 s84, s84, 0x%x" % WS_O)
    for u in range(1, 4):
        E("s_add_u32 s%d, s84, 0x%x" % (84 + u, u * 16384))
    E("s_mov_b32 s60, 0")
    L("L_pml")
    E("buffer_load_dwordx2 v[20:21], v17, s[28:31], s41 offen sc1")
    E("s_waitcnt vmcnt(0)")
    E("v_max_u32 v22, v20, v21")
    E("v_cmp_eq_u32 vcc, -1, v22")
    spin("L_pml", OPT['sl1'])
    L("L_po")
    for u in range(4):
        E("buffer_load_dwordx4 v[%d:%d], v19, s[28:31], s%d offen sc1" % (32 + 4 * u, 35 + 4 * u, 84 + u))
    E("s_waitcnt vmcnt(0)")
    E("v_max3_u32 v22, v32, v33, v34")
    for k in range(35, 47, 2):
        E("v_max3_u32 v22, v22, v%d, v%d" % (k, k + 1))
    E("v_max_u32 v22, v22, v47")
    E("v_cmp_eq_u32 vcc, -1, v22")
    spin("L_po", OPT['sl2'])
    stamp(5)
    E("v_mov_b32 v22, v20")
    for sh in (1, 2, 4, 8):
        E("s_nop 1")
        E("v_max_f32_dpp v22, v22, v22 row_ror:%d row_mask:0xf bank_mask:0xf" % sh)
    E("v_mov_b32 v23, v22")
    E("s_nop 1")
    E("v_permlane16_swap_b32 v22, v23")
    E("v_max_f32 v22, v22, v23")
    E("v_sub_f32 v20, v20, v22")
    E("v_mul_f32 v20, s46, v20")
    E("v_exp_f32 v20, v20")
    E("s_nop 0")
    E("v_mul_f32 v21, v20, v21")
    for sh in (1, 2, 4, 8):
        E("s_nop 1")
        E("v_add_f32_dpp v21, v21, v21 row_ror:%d row_mask:0xf bank_mask:0xf" % sh)
    E("v_mov_b32 v23, v21")
    E("s_nop 1")
    E("v_permlane16_swap_b32 v21, v23")
    E("v_add_f32 v21, v21, v23")
    E("v_rcp_f32 v21, v21")
    E("v_lshlrev_b32 v24, 4, v18")
    for u in range(4):
        E("v_add_u32 v23, %d, v24" % (4 * u))
        E("ds_bpermute_b32 v%d, v23, v20" % (64 + u))
    E("s_waitcnt lgkmcnt(0)")
    for r in range(4):
        E("v_mul_f32 v%d, v64, v%d" % (68 + r, 32 + r))
        for u in range(1, 4):
            E("v_fmac_f32 v%d, v%d, v%d" % (68 + r, 64 + u, 32 + 4 * u + r))
    for r in range(4):
        E("v_mov_b32 v%d, v%d" % (72 + r, 68 + r))
    E("s_nop 1")
    for r in range(4):
        E("v_permlane32_swap_b32 v%d, v%d" % (68 + r, 72 + r))
    for r in range(4):
        E("v_add_f32 v%d, v%d, v%d" % (68 + r, 68 + r, 72 + r))
    E("v_lshlrev_b32 v23, 9, v1")
    E("v_lshl_add_u32 v23, v16, 4, v23")
    E("ds_write_b128 v23, v[68:71] offset:%d" % LDS_T1)
    E("s_waitcnt lgkmcnt(0)")
    E("s_barrier")
    E("v_lshrrev_b32 v25, 4, v0")
    E("v_cmp_gt_u32 vcc, 128, v0")
    E("s_and_saveexec_b64 s[50:51], vcc")
    E("v_lshlrev_b32 v23, 2, v0")
    for w in range(4):
        E("ds_read_b32 v%d, v23 offset:%d" % (68 + w, LDS_T1 + w * 512))
    E("s_waitcnt lgkmcnt(0)")
    E("v_add_f32 v68, v68, v69")
    E("v_add_f32 v70, v70, v71")
    E("v_add_f32 v68, v68, v70")
    E("v_mul_f32 v68, v68, v21")
    E("v_cvt_pk_bf16_f32 v68, v68, v68")
    E("v_lshlrev_b32 v68, 16, v68")
    E("v_lshlrev_b32 v69, 3, v3")
    E("v_add_u32 v69, v69, v25")
    E("v_lshlrev_b32 v69, 2, v69")
    E("ds_write_b32 v69, v68 offset:%d" % LDS_TO)
    E("s_mov_b64 exec, s[50:51]")
    E("s_waitcnt lgkmcnt(0)")
    E("s_barrier")
    E("v_lshlrev_b32 v23, 5, v25")
    E("ds_read_b128 v[64:67], v23 offset:%d" % LDS_TO)
    E("ds_read_b128 v[68:71], v23 offset:%d" % (LDS_TO + 16))
    for k in range(8):
        E("v_mov_b32 v%d, 0" % (72 + k))
    E("s_waitcnt lgkmcnt(0)")
    for ii in range(8):
        for u in range(4):
            src = WREG + 4 * ii + u
            E("v_lshlrev_b32 v80, 16, v%d" % src)
            E("v_and_b32 v81, 0xffff0000, v%d" % src)
            E("v_fmac_f32 v%d, v%d, v80" % (72 + 2 * u, 64 + ii))
            E("v_fmac_f32 v%d, v%d, v81" % (73 + 2 * u, 64 + ii))
    for k in range(8):
        E("v_mov_b32 v%d, v%d" % (80 + k, 72 + k))
    E("s_nop 1")
    for k in range(8):
        E("v_permlane16_swap_b32 v%d, v%d" % (72 + k, 80 + k))
    for k in range(8):
        E("v_add_f32 v%d, v%d, v%d" % (72 + k, 72 + k, 80 + k))
    for k in range(8):
        E("v_mov_b32 v%d, v%d" % (80 + k, 72 + k))
    E("s_nop 1")
    for k in range(8):
        E("v_permlane32_swap_b32 v%d, v%d" % (72 + k, 80 + k))
    for k in range(8):
        E("v_add_f32 v%d, v%d, v%d" % (72 + k, 72 + k, 80 + k))
    E("v_lshlrev_b32 v23, 9, v1")
    E("v_lshl_add_u32 v23, v3, 5, v23")
    E("ds_write_b128 v23, v[72:75] offset:%d" % LDS_T3)
    E("ds_write_b128 v23, v[76:79] offset:%d" % (LDS_T3 + 16))
    E("s_waitcnt lgkmcnt(0)")
    E("s_barrier")
    E("s_lshl_b32 s40, s52, 2")
    E("s_add_u32 s40, s40, s54")
    E("s_lshl_b32 s41, s40, 14")
    E("s_add_u32 s41, s41, 0x%x" % WS_OP)
    E("s_lshl_b32 s42, s55, 9")
    E("s_add_u32 s42, s42, s41")
    E("v_cmp_gt_u32 vcc, 128, v0")
    E("s_and_saveexec_b64 s[50:51], vcc")
    E("v_lshlrev_b32 v23, 2, v0")
    for w in range(4):
        E("ds_read_b32 v%d, v23 offset:%d" % (68 + w, LDS_T3 + w * 512))
    E("s_waitcnt lgkmcnt(0)")
    E("v_add_f32 v68, v68, v69")
    E("v_add_f32 v70, v70, v71")
    E("v_add_f32 v68, v68, v70")
    E("buffer_store_dword v68, v23, s[28:31], s42 offen sc1")
    E("s_mov_b64 exec, s[50:51]")
    stamp(6)
    stamp_flush()
    E("s_lshl_b32 s43, s40, 2")
    E("s_cmp_lg_u32 s43, s55")
    E("s_cbranch_scc1 L_end")
    E("v_and_b32 v23, 127, v0")
    E("v_lshrrev_b32 v24, 7, v0")
    E("v_lshlrev_b32 v25, 13, v24")
    E("v_lshl_add_u32 v25, v23, 2, v25")
    E("s_add_u32 s42, s41, 4096")
    E("s_mov_b32 s60, 0")
    L("L_pf")
    for i in range(16):
        E("buffer_load_dword v%d, v25, s[28:31], s%d offen offset:%d sc1" % (32 + i, 41 if i < 8 else 42, (i & 7) * 512))
    E("s_waitcnt vmcnt(0)")
    E("v_max3_u32 v22, v32, v33, v34")
    for k in range(35, 47, 2):
        E("v_max3_u32 v22, v22, v%d, v%d" % (k, k + 1))
    E("v_max_u32 v22, v22, v47")
    E("v_cmp_eq_u32 vcc, -1, v22")
    spin("L_pf", OPT['sl3'])
    for i in range(1, 16):
        E("v_add_f32 v32, v32, v%d" % (32 + i))
    E("v_lshlrev_b32 v25, 2, v0")
    E("ds_write_b32 v25, v32 offset:%d" % LDS_T4)
    E("s_waitcnt lgkmcnt(0)")
    E("s_barrier")
    E("v_cmp_gt_u32 vcc, 128, v0")
    E("s_and_saveexec_b64 s[50:51], vcc")
    E("s_cbranch_execz L_end")
    E("ds_read_b32 v33, v25 offset:%d" % (LDS_T4 + 512))
    E("s_waitcnt lgkmcnt(0)")
    E("v_add_f32 v32, v32, v33")
    E("v_cvt_pk_bf16_f32 v32, v32, v32")
    E("s_lshl_b32 s43, s40, 8")
    E("v_lshlrev_b32 v25, 1, v0")
    E("buffer_store_short v32, v25, s[72:75], s43 offen")
    E("s_endpgm")
    L("L_waveB")
    main_loop(4, "b", False)
    stamp(3)
    E("s_lshl_b32 s41, s2, 11")
    E("s_add_u32 s41, s41, 0x%x" % (WS_O + 256 * 2048))
    E("v_lshlrev_b32 v7, 9, v3")
    E("v_lshl_add_u32 v7, v4, 4, v7")
    E("v_cmp_gt_u32 vcc, 4, v3")
    E("s_and_saveexec_b64 s[50:51], vcc")
    for i in range(8):
        E("buffer_store_dwordx4 v[%d:%d], v7, s[28:31], s41 offen offset:%d sc1" % (ACC + 4 * i, ACC + 4 * i + 3, i * 64))
    E("v_cmp_gt_u32 vcc, 4, v2")
    E("s_and_b64 exec, exec, vcc")
    E("s_lshl_b32 s41, s2, 7")
    E("s_add_u32 s41, s41, 0x%x" % (WS_ML + 256 * 128))
    E("v_lshlrev_b32 v7, 3, v2")
    E("buffer_store_dwordx2 v[%d:%d], v7, s[28:31], s41 offen sc1" % (MT, TMP))
    E("s_mov_b64 exec, s[50:51]")
    stamp(4)
    stamp_flush()
    L("L_end")
    E("s_endpgm")

def main():
    for o in sys.argv[2:]:
        k, v = o.split('=')
        assert k in OPT, k
        OPT[k] = int(v)
    out.append(HEADER.rstrip())
    out.append("; @launch kernel=pre_kernel grid=(256,1,1) block=(256,1,1) lds=2048")
    out.append("; @launch kernel=main_kernel grid=(256,1,1) block=(320,1,1) lds=%d" % LDS_TOTAL)
    out.append('.amdgcn_target "amdgcn-amd-amdhsa--gfx950"')
    out.append(".text")
    gen_pre()
    gen_main()
    out.append('.section .rodata,"a"')
    out.append(kd("pre_kernel", 128))
    out.append(kd("main_kernel", 256))
    open(sys.argv[1], 'w').write("\n".join(out) + "\n")
main()
```

```python
import struct, sys

NAME = "concat_heads__gqa_block_cached__sliding_block_cached__decode"
WS_Q = 0x0
WS_ML = 0x10000
WS_O = 0x20000
WS_OP = 0x200000
WS_SIZE = 0x400000
CS = (128.0 ** -0.5) * 1.4426950408889634
def f32bits(x): return struct.unpack('<I', struct.pack('<f', x))[0]
CS_BITS = f32bits(CS)
NEGBIG = f32bits(-1.0e30)

out = []
def E(s): out.append("    " + s)
def L(s): out.append(s + ":")
def C(s): out.append("    ; " + s)
HEADER = open('cdna_kernels/%s.s.ref' % NAME).read().split('; Override launch')[0]

def srd(s, size):
    E("s_mov_b32 s%d, 0x%x" % (s + 2, size))
    E("s_mov_b32 s%d, 0x00020000" % (s + 3))

OPT = dict(prio=0, nt=1, ntw=0, stamp=0, pf=2, sl1=2, sl2=1, sl3=1)
LDS_ACC = 0
LDS_ML = 16384
LDS_T1 = 20480
LDS_TO = 22528
LDS_T3 = 24576
LDS_T4 = 26624
LDS_TOTAL = 28672

Q = 16; ACC = 32; S0 = 64; S1 = 68; P = 72; T = 76; SLOT = 96
M = 9; LS = 10; NMC = 11; MT = 12; TMP = 13; MT2 = 14; AL = 15
NSLOT = 5
WREG = SLOT + 32 * 3

def kbegin(name):
    out.append(".globl %s" % name)
    out.append(".p2align 8")
    out.append(".type %s,@function" % name)
    out.append("%s:" % name)

def kd(name, vgpr, sgpr=102):
    return """.p2align 6
.amdhsa_kernel %s
  .amdhsa_next_free_vgpr %d
  .amdhsa_next_free_sgpr %d
  .amdhsa_accum_offset %d
  .amdhsa_group_segment_fixed_size 0
  .amdhsa_kernarg_size 104
  .amdhsa_user_sgpr_count 2
  .amdhsa_user_sgpr_kernarg_segment_ptr 1
  .amdhsa_system_sgpr_workgroup_id_x 1
.end_amdhsa_kernel
""" % (name, vgpr, sgpr, (vgpr + 3) // 4 * 4)

CURK = [1]
def stamp(idx):
    if OPT['stamp'] != CURK[0]: return
    E("s_memrealtime s[92:93]")
    E("s_waitcnt lgkmcnt(0)")
    E("v_writelane_b32 v92, s92, %d" % idx)
def stamp_flush():
    if OPT['stamp'] != CURK[0]: return
    E("s_mov_b64 exec, -1")
    E("s_mul_i32 s92, s2, 5")
    E("s_add_u32 s92, s92, s14")
    E("s_lshl_b32 s92, s92, 8")
    E("s_add_u32 s92, s92, 0x300000")
    E("v_lshlrev_b32 v93, 2, v2")
    E("buffer_store_dword v92, v93, s[28:31], s92 offen")

def roles():
    E("s_and_b32 s16, s2, 7")
    E("s_lshr_b32 s17, s2, 3")
    E("s_lshr_b32 s52, s17, 4")
    E("s_lshr_b32 s53, s17, 2")
    E("s_and_b32 s53, s53, 3")
    E("s_and_b32 s54, s17, 3")
    E("s_lshl_b32 s55, s16, 2")
    E("s_add_u32 s55, s55, s53")

def gen_pre():
    kbegin("pre_kernel")
    CURK[0] = 2
    E("s_cmp_ge_u32 s2, 256")
    E("s_cbranch_scc1 L_p_end")
    if OPT['stamp'] == 2: E("v_mov_b32 v92, 0")
    stamp(0)
    E("s_load_dwordx2 s[4:5], s[0:1], 0")
    E("s_load_dwordx2 s[20:21], s[0:1], 8")
    E("s_load_dwordx2 s[24:25], s[0:1], 16")
    E("s_load_dwordx2 s[10:11], s[0:1], 24")
    E("s_load_dwordx2 s[62:63], s[0:1], 40")
    E("s_load_dwordx2 s[68:69], s[0:1], 64")
    E("s_load_dwordx2 s[28:29], s[0:1], 96")
    E("v_lshrrev_b32 v1, 6, v0")
    E("v_and_b32 v2, 63, v0")
    E("v_readfirstlane_b32 s14, v1")
    roles()
    E("s_lshr_b32 s15, s2, 7")
    E("s_lshl_b32 s18, s16, 4")
    E("s_and_b32 s19, s17, 15")
    E("s_or_b32 s18, s18, s19")
    E("v_and_b32 v10, 3, v0")
    E("v_lshrrev_b32 v11, 2, v0")
    E("v_lshlrev_b32 v12, 13, v11")
    E("v_lshl_add_u32 v12, v10, 4, v12")
    E("v_lshlrev_b32 v13, 1, v11")
    E("v_lshlrev_b32 v7, 4, v2")
    E("s_lshl_b32 s41, s18, 6")
    for i in range(8):
        E("s_add_u32 s%d, s41, 0x%x" % (84 + i, i * 0x80000))
    E("s_waitcnt lgkmcnt(0)")
    E("s_cmp_eq_u32 s15, 0")
    E("s_cselect_b64 s[76:77], s[4:5], s[62:63]")
    E("s_cselect_b64 s[80:81], s[10:11], s[68:69]")
    srd(76, 1024)
    srd(80, 0x400000)
    srd(28, WS_SIZE)
    srd(20, 0x4000000)
    srd(24, 0x4000000)
    ntw = " nt" if OPT['ntw'] else ""
    stamp(1)
    for i in range(8):
        E("buffer_load_dwordx4 v[%d:%d], v12, s[80:83], s%d offen%s" % (32 + 4 * i, 35 + 4 * i, 84 + i, ntw))
    for i in range(8):
        E("buffer_load_ushort v%d, v13, s[76:79], 0 offen offset:%d" % (64 + i, i * 128))
    E("s_lshl_b32 s40, s16, 23")
    E("s_lshl_b32 s41, s17, 18")
    E("s_add_u32 s40, s40, s41")
    E("s_lshl_b32 s41, s14, 16")
    E("s_add_u32 s40, s40, s41")
    pf = OPT['pf']
    for h in range(pf):
        n = h // 2
        E("s_add_u32 s48, s40, 0x%x" % (n * 8192))
        E("s_add_u32 s49, s40, 0x%x" % (n * 8192 + 4096))
        for t in range(2):
            for j in range(4):
                r = 96 + (t * 4 + j) * 4
                E("buffer_load_dwordx4 v[%d:%d], v7, s[%d:%d], s%d offen offset:%d" % (r, r + 3, 20 + 4 * (h & 1), 23 + 4 * (h & 1), 48 + t, j * 1024))
    for k in range(4):
        E("v_mov_b32 v%d, -1" % (88 + k))
    E("s_lshl_b32 s41, s2, 11")
    E("s_add_u32 s41, s41, 0x%x" % WS_O)
    E("s_cmp_eq_u32 s14, 1")
    E("s_cselect_b32 s42, 0x%x, 0" % (256 * 2048))
    E("s_add_u32 s41, s41, s42")
    E("s_cmp_gt_u32 s14, 1")
    E("s_cbranch_scc1 L_p_c2")
    E("buffer_store_dwordx4 v[88:91], v7, s[28:31], s41 offen")
    E("buffer_store_dwordx4 v[88:91], v7, s[28:31], s41 offen offset:1024")
    E("s_branch L_p_c3")
    L("L_p_c2")
    E("s_cmp_lg_u32 s14, 2")
    E("s_cbranch_scc1 L_p_c3")
    E("s_lshl_b32 s41, s52, 2")
    E("s_add_u32 s41, s41, s54")
    E("s_lshl_b32 s41, s41, 5")
    E("s_add_u32 s41, s41, s55")
    E("s_lshl_b32 s41, s41, 9")
    E("s_add_u32 s41, s41, 0x%x" % WS_OP)
    E("v_cmp_gt_u32 vcc, 32, v2")
    E("s_and_saveexec_b64 s[50:51], vcc")
    E("buffer_store_dwordx4 v[88:91], v7, s[28:31], s41 offen")
    E("v_cmp_gt_u32 vcc, 2, v2")
    E("s_and_b64 exec, exec, vcc")
    E("s_lshl_b32 s41, s2, 7")
    E("s_add_u32 s41, s41, 0x%x" % WS_ML)
    E("s_add_u32 s42, s41, 0x%x" % (256 * 128))
    E("buffer_store_dwordx4 v[88:91], v7, s[28:31], s41 offen")
    E("buffer_store_dwordx4 v[88:91], v7, s[28:31], s42 offen")
    E("s_mov_b64 exec, s[50:51]")
    L("L_p_c3")
    for k in range(8):
        E("v_mov_b32 v%d, 0" % (72 + k))
    E("s_waitcnt vmcnt(%d)" % (8 * pf))
    stamp(2)
    for i in range(8):
        E("v_lshlrev_b32 v%d, 16, v%d" % (64 + i, 64 + i))
    for i in range(8):
        for u in range(4):
            src = 32 + 4 * i + u
            E("v_lshlrev_b32 v80, 16, v%d" % src)
            E("v_and_b32 v81, 0xffff0000, v%d" % src)
            E("v_fmac_f32 v%d, v%d, v80" % (72 + 2 * u, 64 + i))
            E("v_fmac_f32 v%d, v%d, v81" % (73 + 2 * u, 64 + i))
    E("s_nop 1")
    for k in range(8):
        E("v_add_f32_dpp v%d, v%d, v%d row_ror:4 row_mask:0xf bank_mask:0xf" % (80 + k, 72 + k, 72 + k))
    E("s_nop 1")
    for k in range(8):
        E("v_add_f32_dpp v%d, v%d, v%d row_ror:8 row_mask:0xf bank_mask:0xf" % (72 + k, 80 + k, 80 + k))
    E("v_lshrrev_b32 v14, 4, v0")
    E("v_lshlrev_b32 v14, 7, v14")
    E("v_lshl_add_u32 v14, v10, 5, v14")
    E("v_and_b32 v3, 15, v0")
    E("v_cmp_gt_u32 vcc, 4, v3")
    E("s_and_saveexec_b64 s[50:51], vcc")
    E("ds_write_b128 v14, v[72:75]")
    E("ds_write_b128 v14, v[76:79] offset:16")
    E("s_mov_b64 exec, s[50:51]")
    E("s_waitcnt lgkmcnt(0)")
    E("s_barrier")
    stamp(3)
    if OPT['stamp'] == 2:
        E("s_waitcnt vmcnt(0)")
        stamp(4)
        stamp_flush()
    E("v_cmp_gt_u32 vcc, 32, v0")
    E("s_and_saveexec_b64 s[50:51], vcc")
    E("s_cbranch_execz L_p_end")
    E("v_lshlrev_b32 v5, 2, v0")
    for r in range(16):
        E("ds_read_b32 v%d, v5 offset:%d" % (32 + r, r * 128))
    E("s_waitcnt lgkmcnt(0)")
    for r in range(1, 16):
        E("v_add_f32 v32, v32, v%d" % (32 + r))
    E("v_cvt_pk_bf16_f32 v32, v32, v32")
    E("s_lshl_b32 s41, s15, 13")
    E("s_lshl_b32 s42, s18, 6")
    E("s_add_u32 s41, s41, s42")
    E("v_lshlrev_b32 v5, 1, v0")
    E("buffer_store_short v32, v5, s[28:31], s41 offen offset:%d" % WS_Q)
    L("L_p_end")
    E("s_endpgm")

def issue(h):
    NT = " nt" if OPT['nt'] else ""
    base = SLOT + 32 * (h % NSLOT)
    if h < 2:
        E("s_mov_b32 s48, s47")
        E("s_add_u32 s49, s47, 4096")
        ks, vs = 64, 68
    else:
        n = h // 2 - 1
        E("s_add_u32 s48, s40, 0x%x" % (n * 8192))
        E("s_add_u32 s49, s40, 0x%x" % (n * 8192 + 4096))
        ks, vs = 20, 24
    if h % 2 == 0:
        for t in range(2):
            for j in range(4):
                r = base + (t * 4 + j) * 4
                E("buffer_load_dwordx4 v[%d:%d], v5, s[%d:%d], s%d offen offset:%d%s" % (r, r + 3, ks, ks + 3, 48 + t, j * 64, NT))
    else:
        for t in range(2):
            for rr in range(4):
                r = base + (t * 4 + rr) * 4
                E("buffer_load_dwordx4 v[%d:%d], v6, s[%d:%d], s%d offen offset:%d%s" % (r, r + 3, vs, vs + 3, 48 + t, rr * 256, NT))

def finish_state(ab):
    E("v_mov_b32 v%d, v%d" % (TMP, LS))
    E("s_nop 1")
    E("v_permlane32_swap_b32 v%d, v%d" % (LS, TMP))
    E("v_add_f32 v%d, v%d, v%d" % (LS, LS, TMP))
    E("v_mov_b32 v%d, v%d" % (TMP, LS))
    E("s_nop 1")
    E("v_permlane16_swap_b32 v%d, v%d" % (LS, TMP))
    E("v_add_f32 v%d, v%d, v%d" % (LS, LS, TMP))
    E("v_mov_b32 v%d, v%d" % (MT, M))
    E("v_mov_b32 v%d, v%d" % (TMP, LS))
    E("s_lshl_b32 s41, s14, 11")
    E("v_lshlrev_b32 v7, 6, v4")
    E("v_lshl_add_u32 v7, v3, 4, v7")
    E("v_add_u32 v7, s41, v7")
    E("s_lshl_b32 s41, s14, 5")
    E("v_lshlrev_b32 v14, 3, v3")
    E("v_add_u32 v14, s41, v14")
    E("v_cmp_gt_u32 vcc, 4, v3")
    E("s_and_saveexec_b64 s[50:51], vcc")
    for i in range(8):
        E("ds_write_b128 v7, v[%d:%d] offset:%d" % (ACC + 4 * i, ACC + 4 * i + 3, LDS_ACC + ab * 8192 + i * 256))
    E("ds_write_b64 v14, v[%d:%d] offset:%d" % (MT, TMP, LDS_ML + ab * 128))
    E("s_mov_b64 exec, s[50:51]")

def main_loop(ntiles, tag, wo_prefetch):
    NH = 2 * ntiles
    extra = 0
    ntw = " nt" if OPT['ntw'] else ""
    for n in range(ntiles):
        C("---- tile %d" % n)
        h = 2 * n
        base = SLOT + 32 * (h % NSLOT)
        issued = min(NH, h + NSLOT)
        E("s_waitcnt vmcnt(%d)" % (8 * (issued - h - 1) + extra))
        for j in range(4):
            for t in range(2):
                r = base + (t * 4 + j) * 4
                S = S0 if t == 0 else S1
                c = "0" if j == 0 else "v[%d:%d]" % (S, S + 3)
                QQ = T if n == 0 else Q
                E("v_mfma_f32_16x16x32_bf16 v[%d:%d], v[%d:%d], v[%d:%d], %s" % (S, S + 3, r, r + 3, QQ + 4 * j, QQ + 4 * j + 3, c))
        if h + NSLOT < NH:
            issue(h + NSLOT)
        else:
            E("s_nop 7")
            E("s_nop 1")
        E("v_max3_f32 v%d, v%d, v%d, v%d" % (MT, S0, S0 + 1, S0 + 2))
        E("v_max3_f32 v%d, v%d, v%d, v%d" % (MT2, S0 + 3, S1, S1 + 1))
        E("v_max3_f32 v%d, v%d, v%d, v%d" % (MT, MT, S1 + 2, S1 + 3))
        E("v_max_f32 v%d, v%d, v%d" % (MT, MT, MT2))
        E("v_mov_b32 v%d, v%d" % (TMP, MT))
        E("s_nop 1")
        E("v_permlane32_swap_b32 v%d, v%d" % (MT, TMP))
        E("v_max_f32 v%d, v%d, v%d" % (MT, MT, TMP))
        E("v_mov_b32 v%d, v%d" % (TMP, MT))
        E("s_nop 1")
        E("v_permlane16_swap_b32 v%d, v%d" % (MT, TMP))
        E("v_max3_f32 v%d, v%d, v%d, v%d" % (MT, MT, TMP, M))
        E("v_cmp_gt_f32 vcc, v%d, v%d" % (MT, M))
        E("s_cbranch_vccz L_nors_%s_%d" % (tag, n))
        E("v_sub_f32 v%d, v%d, v%d" % (AL, M, MT))
        E("v_mul_f32 v%d, s46, v%d" % (AL, AL))
        E("v_exp_f32 v%d, v%d" % (AL, AL))
        E("s_nop 0")
        E("v_mul_f32 v%d, v%d, v%d" % (LS, LS, AL))
        for k in range(32):
            E("v_mul_f32 v%d, v%d, v%d" % (ACC + k, ACC + k, AL))
        L("L_nors_%s_%d" % (tag, n))
        E("v_mov_b32 v%d, v%d" % (M, MT))
        E("v_mul_f32 v%d, s46, v%d" % (NMC, MT))
        for k in range(8):
            E("v_fma_f32 v%d, v%d, s46, -v%d" % (S0 + k, S0 + k, NMC))
        for k in range(8):
            E("v_exp_f32 v%d, v%d" % (S0 + k, S0 + k))
        E("s_nop 0")
        for w in range(4):
            E("v_cvt_pk_bf16_f32 v%d, v%d, v%d" % (P + w, S0 + 2 * w, S0 + 2 * w + 1))
        for k in range(8):
            E("v_add_f32 v%d, v%d, v%d" % (LS, LS, S0 + k))
        h = 2 * n + 1
        base = SLOT + 32 * (h % NSLOT)
        issued = min(NH, h + NSLOT)
        E("s_waitcnt vmcnt(%d)" % (8 * (issued - h - 1) + extra))
        def perms(u):
            tb = T + 8 * (u & 1)
            for w in range(4):
                a = base + (2 * w) * 4 + u
                b = base + (2 * w + 1) * 4 + u
                E("v_perm_b32 v%d, v%d, v%d, s44" % (tb + w, b, a))
            for w in range(4):
                a = base + (2 * w) * 4 + u
                b = base + (2 * w + 1) * 4 + u
                E("v_perm_b32 v%d, v%d, v%d, s45" % (tb + 4 + w, b, a))
        def mf(u):
            tb = T + 8 * (u & 1)
            for x in range(2):
                i = 2 * u + x
                E("v_mfma_f32_16x16x32_bf16 v[%d:%d], v[%d:%d], v[%d:%d], v[%d:%d]" % (ACC + 4 * i, ACC + 4 * i + 3, tb + 4 * x, tb + 4 * x + 3, P, P + 3, ACC + 4 * i, ACC + 4 * i + 3))
        perms(0); perms(1); mf(0); perms(2); mf(1); perms(3)
        if h + NSLOT < NH:
            issue(h + NSLOT)
        elif wo_prefetch and h == 13:
            C("wo slice prefetch")
            for ii in range(8):
                E("buffer_load_dwordx4 v[%d:%d], v8, s[32:35], s%d offen offset:%d%s" % (WREG + 4 * ii, WREG + 4 * ii + 3, 56 + (ii >> 2), (ii & 3) * 1024, ntw))
            extra = 8
        mf(2)
        E("s_nop 1")
        mf(3)
        if n == 0:
            finish_state(1)
            E("s_waitcnt lgkmcnt(0)")
            init_state()
    finish_state(0)

def init_state():
    for k in range(32):
        E("v_mov_b32 v%d, 0" % (ACC + k))
    E("v_mov_b32 v%d, 0x%08x" % (M, NEGBIG))
    E("v_mov_b32 v%d, 0" % LS)

def spin(label, sleep):
    E("s_cbranch_vccz %s_done" % label)
    E("s_add_u32 s60, s60, 1")
    E("s_cmp_lt_u32 s60, 0x40000")
    E("s_cbranch_scc0 %s_done" % label)
    E("s_sleep %d" % sleep)
    E("s_branch %s" % label)
    L(label + "_done")

def gen_main():
    kbegin("main_kernel")
    CURK[0] = 1
    E("s_cmp_ge_u32 s2, 256")
    E("s_cbranch_scc1 L_end")
    E("s_load_dwordx2 s[6:7], s[0:1], 8")
    E("s_load_dwordx2 s[8:9], s[0:1], 16")
    E("s_load_dwordx2 s[12:13], s[0:1], 32")
    E("s_load_dwordx2 s[64:65], s[0:1], 48")
    E("s_load_dwordx2 s[66:67], s[0:1], 56")
    E("s_load_dwordx2 s[70:71], s[0:1], 72")
    E("s_load_dwordx2 s[72:73], s[0:1], 80")
    E("s_load_dwordx2 s[28:29], s[0:1], 96")
    E("v_lshrrev_b32 v1, 6, v0")
    E("v_and_b32 v2, 63, v0")
    E("v_readfirstlane_b32 s14, v1")
    roles()
    E("s_lshl_b32 s56, s55, 17")
    E("s_lshl_b32 s57, s54, 8")
    E("s_add_u32 s56, s56, s57")
    E("s_add_u32 s57, s56, 4096")
    E("v_and_b32 v3, 15, v2")
    E("v_lshrrev_b32 v4, 4, v2")
    E("v_lshlrev_b32 v5, 8, v3")
    E("v_lshl_add_u32 v5, v4, 4, v5")
    E("v_lshlrev_b32 v6, 10, v4")
    E("v_lshl_add_u32 v6, v3, 4, v6")
    E("s_mov_b32 s44, 0x05040100")
    E("s_mov_b32 s45, 0x07060302")
    E("s_mov_b32 s46, 0x%08x" % CS_BITS)
    E("s_lshl_b32 s40, s16, 23")
    E("s_lshl_b32 s41, s17, 15")
    E("s_lshl_b32 s42, s14, 13")
    E("s_add_u32 s47, s40, s41")
    E("s_add_u32 s47, s47, s42")
    E("s_add_u32 s47, s47, 0x%x" % (28672 * 256))
    E("s_lshl_b32 s41, s17, 18")
    E("s_lshl_b32 s42, s14, 16")
    E("s_add_u32 s40, s40, s41")
    E("s_add_u32 s40, s40, s42")
    E("s_lshl_b32 s41, s16, 10")
    E("v_add_u32 v7, s41, v5")
    E("v_mov_b32 v8, 0x80000000")
    E("v_cmp_gt_u32 vcc, 4, v3")
    E("s_nop 1")
    E("v_cndmask_b32 v7, v8, v7, vcc")
    E("v_lshrrev_b32 v8, 4, v0")
    E("v_lshlrev_b32 v8, 13, v8")
    E("v_lshl_add_u32 v8, v3, 4, v8")
    E("s_waitcnt lgkmcnt(0)")
    srd(28, WS_SIZE)
    srd(72, 2048)
    E("s_cmp_eq_u32 s52, 0")
    E("s_cselect_b64 s[32:33], s[12:13], s[70:71]")
    srd(32, 0x400000)
    E("s_mov_b64 s[20:21], s[6:7]")
    E("s_mov_b64 s[24:25], s[8:9]")
    E("s_mov_b64 s[68:69], s[66:67]")
    srd(20, 0x4000000)
    srd(24, 0x4000000)
    srd(64, 0x4000000)
    srd(68, 0x4000000)
    E("s_movk_i32 s41, 0x2000")
    if OPT['stamp'] == 1: E("v_mov_b32 v92, 0")
    stamp(0)
    for j in range(4):
        E("buffer_load_dwordx4 v[%d:%d], v7, s[28:31], s41 offen offset:%d" % (T + 4 * j, T + 4 * j + 3, WS_Q + j * 64))
    for j in range(4):
        E("buffer_load_dwordx4 v[%d:%d], v7, s[28:31], 0 offen offset:%d" % (Q + 4 * j, Q + 4 * j + 3, WS_Q + j * 64))
    for h in range(NSLOT):
        issue(h)
    init_state()
    stamp(1)
    main_loop(9, "a", True)
    stamp(3)
    E("s_waitcnt lgkmcnt(0)")
    E("s_barrier")
    E("s_lshr_b32 s15, s14, 1")
    E("v_bfe_u32 v16, v0, 4, 3")
    E("v_bfe_u32 v17, v0, 2, 2")
    E("v_and_b32 v18, 3, v0")
    E("v_lshlrev_b32 v19, 8, v16")
    E("v_lshl_add_u32 v19, v17, 6, v19")
    E("v_lshl_add_u32 v19, v18, 4, v19")
    E("s_lshl_b32 s41, s15, 13")
    E("v_add_u32 v19, s41, v19")
    E("v_lshlrev_b32 v20, 3, v18")
    E("s_lshl_b32 s41, s15, 7")
    E("v_add_u32 v22, s41, v20")
    for w in range(4):
        E("ds_read_b128 v[%d:%d], v19 offset:%d" % (32 + 4 * w, 35 + 4 * w, LDS_ACC + w * 2048))
    for w in range(4):
        E("ds_read_b64 v[%d:%d], v22 offset:%d" % (48 + 2 * w, 49 + 2 * w, LDS_ML + w * 32))
    E("s_waitcnt lgkmcnt(0)")
    E("v_max3_f32 v56, v48, v50, v52")
    E("v_max_f32 v56, v56, v54")
    for w in range(4):
        E("v_sub_f32 v%d, v%d, v56" % (58 + w, 48 + 2 * w))
        E("v_mul_f32 v%d, s46, v%d" % (58 + w, 58 + w))
        E("v_exp_f32 v%d, v%d" % (58 + w, 58 + w))
    E("s_nop 0")
    E("v_mul_f32 v57, v58, v49")
    for w in range(1, 4):
        E("v_fmac_f32 v57, v%d, v%d" % (58 + w, 49 + 2 * w))
    for r in range(4):
        E("v_mul_f32 v%d, v58, v%d" % (64 + r, 32 + r))
        for w in range(1, 4):
            E("v_fmac_f32 v%d, v%d, v%d" % (64 + r, 58 + w, 32 + 4 * w + r))
    E("s_lshl_b32 s42, s15, 8")
    E("s_add_u32 s42, s42, s2")
    E("s_lshl_b32 s41, s42, 11")
    E("s_add_u32 s41, s41, 0x%x" % WS_O)
    E("v_lshlrev_b32 v21, 9, v18")
    E("v_lshl_add_u32 v21, v16, 6, v21")
    E("v_lshl_add_u32 v21, v17, 4, v21")
    E("buffer_store_dwordx4 v[64:67], v21, s[28:31], s41 offen sc1")
    E("v_and_b32 v23, 127, v0")
    E("v_cmp_gt_u32 vcc, 4, v23")
    E("s_and_saveexec_b64 s[50:51], vcc")
    E("s_lshl_b32 s41, s42, 7")
    E("s_add_u32 s41, s41, 0x%x" % WS_ML)
    E("buffer_store_dwordx2 v[56:57], v20, s[28:31], s41 offen sc1")
    E("s_mov_b64 exec, s[50:51]")
    stamp(4)
    E("s_lshl_b32 s40, s52, 8")
    E("s_add_u32 s40, s40, s16")
    E("v_and_b32 v16, 31, v0")
    E("v_lshlrev_b32 v17, 10, v16")
    E("s_lshl_b32 s41, s40, 7")
    E("s_lshl_b32 s42, s53, 3")
    E("s_add_u32 s41, s41, s42")
    E("s_add_u32 s41, s41, 0x%x" % WS_ML)
    E("v_lshrrev_b32 v18, 5, v0")
    E("v_lshlrev_b32 v19, 16, v18")
    E("v_lshl_add_u32 v19, v16, 4, v19")
    E("s_lshl_b32 s84, s40, 11")
    E("s_lshl_b32 s42, s53, 9")
    E("s_add_u32 s84, s84, s42")
    E("s_add_u32 s84, s84, 0x%x" % WS_O)
    for u in range(1, 4):
        E("s_add_u32 s%d, s84, 0x%x" % (84 + u, u * 16384))
    E("s_mov_b32 s60, 0")
    L("L_pml")
    E("buffer_load_dwordx2 v[20:21], v17, s[28:31], s41 offen sc1")
    E("s_waitcnt vmcnt(0)")
    E("v_max_u32 v22, v20, v21")
    E("v_cmp_eq_u32 vcc, -1, v22")
    spin("L_pml", OPT['sl1'])
    L("L_po")
    for u in range(4):
        E("buffer_load_dwordx4 v[%d:%d], v19, s[28:31], s%d offen sc1" % (32 + 4 * u, 35 + 4 * u, 84 + u))
    E("s_waitcnt vmcnt(0)")
    E("v_max3_u32 v22, v32, v33, v34")
    for k in range(35, 47, 2):
        E("v_max3_u32 v22, v22, v%d, v%d" % (k, k + 1))
    E("v_max_u32 v22, v22, v47")
    E("v_cmp_eq_u32 vcc, -1, v22")
    spin("L_po", OPT['sl2'])
    stamp(5)
    E("v_mov_b32 v22, v20")
    for sh in (1, 2, 4, 8):
        E("s_nop 1")
        E("v_max_f32_dpp v22, v22, v22 row_ror:%d row_mask:0xf bank_mask:0xf" % sh)
    E("v_mov_b32 v23, v22")
    E("s_nop 1")
    E("v_permlane16_swap_b32 v22, v23")
    E("v_max_f32 v22, v22, v23")
    E("v_sub_f32 v20, v20, v22")
    E("v_mul_f32 v20, s46, v20")
    E("v_exp_f32 v20, v20")
    E("s_nop 0")
    E("v_mul_f32 v21, v20, v21")
    for sh in (1, 2, 4, 8):
        E("s_nop 1")
        E("v_add_f32_dpp v21, v21, v21 row_ror:%d row_mask:0xf bank_mask:0xf" % sh)
    E("v_mov_b32 v23, v21")
    E("s_nop 1")
    E("v_permlane16_swap_b32 v21, v23")
    E("v_add_f32 v21, v21, v23")
    E("v_rcp_f32 v21, v21")
    E("v_lshlrev_b32 v24, 4, v18")
    for u in range(4):
        E("v_add_u32 v23, %d, v24" % (4 * u))
        E("ds_bpermute_b32 v%d, v23, v20" % (64 + u))
    E("s_waitcnt lgkmcnt(0)")
    for r in range(4):
        E("v_mul_f32 v%d, v64, v%d" % (68 + r, 32 + r))
        for u in range(1, 4):
            E("v_fmac_f32 v%d, v%d, v%d" % (68 + r, 64 + u, 32 + 4 * u + r))
    for r in range(4):
        E("v_mov_b32 v%d, v%d" % (72 + r, 68 + r))
    E("s_nop 1")
    for r in range(4):
        E("v_permlane32_swap_b32 v%d, v%d" % (68 + r, 72 + r))
    for r in range(4):
        E("v_add_f32 v%d, v%d, v%d" % (68 + r, 68 + r, 72 + r))
    E("v_lshlrev_b32 v23, 9, v1")
    E("v_lshl_add_u32 v23, v16, 4, v23")
    E("ds_write_b128 v23, v[68:71] offset:%d" % LDS_T1)
    E("s_waitcnt lgkmcnt(0)")
    E("s_barrier")
    E("v_lshrrev_b32 v25, 4, v0")
    E("v_cmp_gt_u32 vcc, 128, v0")
    E("s_and_saveexec_b64 s[50:51], vcc")
    E("v_lshlrev_b32 v23, 2, v0")
    for w in range(4):
        E("ds_read_b32 v%d, v23 offset:%d" % (68 + w, LDS_T1 + w * 512))
    E("s_waitcnt lgkmcnt(0)")
    E("v_add_f32 v68, v68, v69")
    E("v_add_f32 v70, v70, v71")
    E("v_add_f32 v68, v68, v70")
    E("v_mul_f32 v68, v68, v21")
    E("v_cvt_pk_bf16_f32 v68, v68, v68")
    E("v_lshlrev_b32 v68, 16, v68")
    E("v_lshlrev_b32 v69, 3, v3")
    E("v_add_u32 v69, v69, v25")
    E("v_lshlrev_b32 v69, 2, v69")
    E("ds_write_b32 v69, v68 offset:%d" % LDS_TO)
    E("s_mov_b64 exec, s[50:51]")
    E("s_waitcnt lgkmcnt(0)")
    E("s_barrier")
    E("v_lshlrev_b32 v23, 5, v25")
    E("ds_read_b128 v[64:67], v23 offset:%d" % LDS_TO)
    E("ds_read_b128 v[68:71], v23 offset:%d" % (LDS_TO + 16))
    for k in range(8):
        E("v_mov_b32 v%d, 0" % (72 + k))
    E("s_waitcnt lgkmcnt(0)")
    for ii in range(8):
        for u in range(4):
            src = WREG + 4 * ii + u
            E("v_lshlrev_b32 v80, 16, v%d" % src)
            E("v_and_b32 v81, 0xffff0000, v%d" % src)
            E("v_fmac_f32 v%d, v%d, v80" % (72 + 2 * u, 64 + ii))
            E("v_fmac_f32 v%d, v%d, v81" % (73 + 2 * u, 64 + ii))
    for k in range(8):
        E("v_mov_b32 v%d, v%d" % (80 + k, 72 + k))
    E("s_nop 1")
    for k in range(8):
        E("v_permlane16_swap_b32 v%d, v%d" % (72 + k, 80 + k))
    for k in range(8):
        E("v_add_f32 v%d, v%d, v%d" % (72 + k, 72 + k, 80 + k))
    for k in range(8):
        E("v_mov_b32 v%d, v%d" % (80 + k, 72 + k))
    E("s_nop 1")
    for k in range(8):
        E("v_permlane32_swap_b32 v%d, v%d" % (72 + k, 80 + k))
    for k in range(8):
        E("v_add_f32 v%d, v%d, v%d" % (72 + k, 72 + k, 80 + k))
    E("v_lshlrev_b32 v23, 9, v1")
    E("v_lshl_add_u32 v23, v3, 5, v23")
    E("ds_write_b128 v23, v[72:75] offset:%d" % LDS_T3)
    E("ds_write_b128 v23, v[76:79] offset:%d" % (LDS_T3 + 16))
    E("s_waitcnt lgkmcnt(0)")
    E("s_barrier")
    E("s_lshl_b32 s40, s52, 2")
    E("s_add_u32 s40, s40, s54")
    E("s_lshl_b32 s41, s40, 14")
    E("s_add_u32 s41, s41, 0x%x" % WS_OP)
    E("s_lshl_b32 s42, s55, 9")
    E("s_add_u32 s42, s42, s41")
    E("v_cmp_gt_u32 vcc, 128, v0")
    E("s_and_saveexec_b64 s[50:51], vcc")
    E("v_lshlrev_b32 v23, 2, v0")
    for w in range(4):
        E("ds_read_b32 v%d, v23 offset:%d" % (68 + w, LDS_T3 + w * 512))
    E("s_waitcnt lgkmcnt(0)")
    E("v_add_f32 v68, v68, v69")
    E("v_add_f32 v70, v70, v71")
    E("v_add_f32 v68, v68, v70")
    E("buffer_store_dword v68, v23, s[28:31], s42 offen sc1")
    E("s_mov_b64 exec, s[50:51]")
    stamp(6)
    stamp_flush()
    E("s_lshl_b32 s43, s40, 2")
    E("s_cmp_lg_u32 s43, s55")
    E("s_cbranch_scc1 L_end")
    E("v_and_b32 v23, 127, v0")
    E("v_lshrrev_b32 v24, 7, v0")
    E("v_lshlrev_b32 v25, 13, v24")
    E("v_lshl_add_u32 v25, v23, 2, v25")
    E("s_add_u32 s42, s41, 4096")
    E("s_mov_b32 s60, 0")
    L("L_pf")
    for i in range(16):
        E("buffer_load_dword v%d, v25, s[28:31], s%d offen offset:%d sc1" % (32 + i, 41 if i < 8 else 42, (i & 7) * 512))
    E("s_waitcnt vmcnt(0)")
    E("v_max3_u32 v22, v32, v33, v34")
    for k in range(35, 47, 2):
        E("v_max3_u32 v22, v22, v%d, v%d" % (k, k + 1))
    E("v_max_u32 v22, v22, v47")
    E("v_cmp_eq_u32 vcc, -1, v22")
    spin("L_pf", OPT['sl3'])
    for i in range(1, 16):
        E("v_add_f32 v32, v32, v%d" % (32 + i))
    E("v_lshlrev_b32 v25, 2, v0")
    E("ds_write_b32 v25, v32 offset:%d" % LDS_T4)
    E("s_waitcnt lgkmcnt(0)")
    E("s_barrier")
    E("v_cmp_gt_u32 vcc, 128, v0")
    E("s_and_saveexec_b64 s[50:51], vcc")
    E("s_cbranch_execz L_end")
    E("ds_read_b32 v33, v25 offset:%d" % (LDS_T4 + 512))
    E("s_waitcnt lgkmcnt(0)")
    E("v_add_f32 v32, v32, v33")
    E("v_cvt_pk_bf16_f32 v32, v32, v32")
    E("s_lshl_b32 s43, s40, 8")
    E("v_lshlrev_b32 v25, 1, v0")
    E("buffer_store_short v32, v25, s[72:75], s43 offen")
    E("s_endpgm")
    L("L_end")
    E("s_endpgm")

def main():
    for o in sys.argv[2:]:
        k, v = o.split('=')
        assert k in OPT, k
        OPT[k] = int(v)
    out.append(HEADER.rstrip())
    out.append("; @launch kernel=pre_kernel grid=(256,1,1) block=(256,1,1) lds=2048")
    out.append("; @launch kernel=main_kernel grid=(256,1,1) block=(256,1,1) lds=%d" % LDS_TOTAL)
    out.append('.amdgcn_target "amdgcn-amd-amdhsa--gfx950"')
    out.append(".text")
    gen_pre()
    gen_main()
    out.append('.section .rodata,"a"')
    out.append(kd("pre_kernel", 128))
    out.append(kd("main_kernel", 256))
    open(sys.argv[1], 'w').write("\n".join(out) + "\n")
main()
```

```python
import struct, sys

NAME = "concat_heads__gqa_block_cached__sliding_block_cached__decode"
WS_Q = 0x0
WS_ML = 0x10000
WS_O = 0x20000
WS_OP = 0x200000
WS_SIZE = 0x400000
CS = (128.0 ** -0.5) * 1.4426950408889634
def f32bits(x): return struct.unpack('<I', struct.pack('<f', x))[0]
CS_BITS = f32bits(CS)
NEGBIG = f32bits(-1.0e30)

out = []
def E(s): out.append("    " + s)
def L(s): out.append(s + ":")
def C(s): out.append("    ; " + s)
HEADER = open('cdna_kernels/%s.s.ref' % NAME).read().split('; Override launch')[0]

def srd(s, size):
    E("s_mov_b32 s%d, 0x%x" % (s + 2, size))
    E("s_mov_b32 s%d, 0x00020000" % (s + 3))

OPT = dict(il=0, prio=0, nt=1, ntw=0, stamp=0, pf=2, sl1=2, sl2=1, sl3=1)
LDS_ACC = 0
LDS_ML = 16384
LDS_T1 = 20480
LDS_TO = 22528
LDS_T3 = 24576
LDS_T4 = 26624
LDS_TOTAL = 28672

Q = 16; ACC = 32; S0 = 64; S1 = 68; P = 72; T = 76; SLOT = 96
M = 9; LS = 10; NMC = 11; MT = 12; TMP = 13; MT2 = 14; AL = 15
NSLOT = 5
WREG = SLOT + 32 * 3

def kbegin(name):
    out.append(".globl %s" % name)
    out.append(".p2align 8")
    out.append(".type %s,@function" % name)
    out.append("%s:" % name)

def kd(name, vgpr, sgpr=102):
    return """.p2align 6
.amdhsa_kernel %s
  .amdhsa_next_free_vgpr %d
  .amdhsa_next_free_sgpr %d
  .amdhsa_accum_offset %d
  .amdhsa_group_segment_fixed_size 0
  .amdhsa_kernarg_size 104
  .amdhsa_user_sgpr_count 2
  .amdhsa_user_sgpr_kernarg_segment_ptr 1
  .amdhsa_system_sgpr_workgroup_id_x 1
.end_amdhsa_kernel
""" % (name, vgpr, sgpr, (vgpr + 3) // 4 * 4)

CURK = [1]
def stamp(idx):
    if OPT['stamp'] != CURK[0]: return
    E("s_memrealtime s[92:93]")
    E("s_waitcnt lgkmcnt(0)")
    E("v_writelane_b32 v92, s92, %d" % idx)
def stamp_flush():
    if OPT['stamp'] != CURK[0]: return
    E("s_mov_b64 exec, -1")
    E("s_mul_i32 s92, s2, 5")
    E("s_add_u32 s92, s92, s14")
    E("s_lshl_b32 s92, s92, 8")
    E("s_add_u32 s92, s92, 0x300000")
    E("v_lshlrev_b32 v93, 2, v2")
    E("buffer_store_dword v92, v93, s[28:31], s92 offen")

def roles():
    E("s_and_b32 s16, s2, 7")
    E("s_lshr_b32 s17, s2, 3")
    E("s_lshr_b32 s52, s17, 4")
    E("s_lshr_b32 s53, s17, 2")
    E("s_and_b32 s53, s53, 3")
    E("s_and_b32 s54, s17, 3")
    E("s_lshl_b32 s55, s16, 2")
    E("s_add_u32 s55, s55, s53")

def gen_pre():
    kbegin("pre_kernel")
    CURK[0] = 2
    E("s_cmp_ge_u32 s2, 256")
    E("s_cbranch_scc1 L_p_end")
    if OPT['stamp'] == 2: E("v_mov_b32 v92, 0")
    stamp(0)
    E("s_load_dwordx2 s[4:5], s[0:1], 0")
    E("s_load_dwordx2 s[20:21], s[0:1], 8")
    E("s_load_dwordx2 s[24:25], s[0:1], 16")
    E("s_load_dwordx2 s[10:11], s[0:1], 24")
    E("s_load_dwordx2 s[62:63], s[0:1], 40")
    E("s_load_dwordx2 s[68:69], s[0:1], 64")
    E("s_load_dwordx2 s[28:29], s[0:1], 96")
    E("v_lshrrev_b32 v1, 6, v0")
    E("v_and_b32 v2, 63, v0")
    E("v_readfirstlane_b32 s14, v1")
    roles()
    E("s_lshr_b32 s15, s2, 7")
    E("s_lshl_b32 s18, s16, 4")
    E("s_and_b32 s19, s17, 15")
    E("s_or_b32 s18, s18, s19")
    E("v_and_b32 v10, 3, v0")
    E("v_lshrrev_b32 v11, 2, v0")
    E("v_lshlrev_b32 v12, 13, v11")
    E("v_lshl_add_u32 v12, v10, 4, v12")
    E("v_lshlrev_b32 v13, 1, v11")
    E("v_lshlrev_b32 v7, 4, v2")
    E("s_lshl_b32 s41, s18, 6")
    for i in range(8):
        E("s_add_u32 s%d, s41, 0x%x" % (84 + i, i * 0x80000))
    E("s_waitcnt lgkmcnt(0)")
    E("s_cmp_eq_u32 s15, 0")
    E("s_cselect_b64 s[76:77], s[4:5], s[62:63]")
    E("s_cselect_b64 s[80:81], s[10:11], s[68:69]")
    srd(76, 1024)
    srd(80, 0x400000)
    srd(28, WS_SIZE)
    srd(20, 0x4000000)
    srd(24, 0x4000000)
    ntw = " nt" if OPT['ntw'] else ""
    stamp(1)
    for i in range(8):
        E("buffer_load_dwordx4 v[%d:%d], v12, s[80:83], s%d offen%s" % (32 + 4 * i, 35 + 4 * i, 84 + i, ntw))
    for i in range(8):
        E("buffer_load_ushort v%d, v13, s[76:79], 0 offen offset:%d" % (64 + i, i * 128))
    E("s_lshl_b32 s40, s16, 23")
    E("s_lshl_b32 s41, s17, 18")
    E("s_add_u32 s40, s40, s41")
    E("s_lshl_b32 s41, s14, 16")
    E("s_add_u32 s40, s40, s41")
    pf = OPT['pf']
    for h in range(pf):
        n = h // 2
        E("s_add_u32 s48, s40, 0x%x" % (n * 8192))
        E("s_add_u32 s49, s40, 0x%x" % (n * 8192 + 4096))
        for t in range(2):
            for j in range(4):
                r = 96 + (t * 4 + j) * 4
                E("buffer_load_dwordx4 v[%d:%d], v7, s[%d:%d], s%d offen offset:%d" % (r, r + 3, 20 + 4 * (h & 1), 23 + 4 * (h & 1), 48 + t, j * 1024))
    for k in range(4):
        E("v_mov_b32 v%d, -1" % (88 + k))
    E("s_lshl_b32 s41, s2, 11")
    E("s_add_u32 s41, s41, 0x%x" % WS_O)
    E("s_cmp_eq_u32 s14, 1")
    E("s_cselect_b32 s42, 0x%x, 0" % (256 * 2048))
    E("s_add_u32 s41, s41, s42")
    E("s_cmp_gt_u32 s14, 1")
    E("s_cbranch_scc1 L_p_c2")
    E("buffer_store_dwordx4 v[88:91], v7, s[28:31], s41 offen")
    E("buffer_store_dwordx4 v[88:91], v7, s[28:31], s41 offen offset:1024")
    E("s_branch L_p_c3")
    L("L_p_c2")
    E("s_cmp_lg_u32 s14, 2")
    E("s_cbranch_scc1 L_p_c3")
    E("s_lshl_b32 s41, s52, 2")
    E("s_add_u32 s41, s41, s54")
    E("s_lshl_b32 s41, s41, 5")
    E("s_add_u32 s41, s41, s55")
    E("s_lshl_b32 s41, s41, 9")
    E("s_add_u32 s41, s41, 0x%x" % WS_OP)
    E("v_cmp_gt_u32 vcc, 32, v2")
    E("s_and_saveexec_b64 s[50:51], vcc")
    E("buffer_store_dwordx4 v[88:91], v7, s[28:31], s41 offen")
    E("v_cmp_gt_u32 vcc, 2, v2")
    E("s_and_b64 exec, exec, vcc")
    E("s_lshl_b32 s41, s2, 7")
    E("s_add_u32 s41, s41, 0x%x" % WS_ML)
    E("s_add_u32 s42, s41, 0x%x" % (256 * 128))
    E("buffer_store_dwordx4 v[88:91], v7, s[28:31], s41 offen")
    E("buffer_store_dwordx4 v[88:91], v7, s[28:31], s42 offen")
    E("s_mov_b64 exec, s[50:51]")
    L("L_p_c3")
    for k in range(8):
        E("v_mov_b32 v%d, 0" % (72 + k))
    E("s_waitcnt vmcnt(%d)" % (8 * pf))
    stamp(2)
    for i in range(8):
        E("v_lshlrev_b32 v%d, 16, v%d" % (64 + i, 64 + i))
    for i in range(8):
        for u in range(4):
            src = 32 + 4 * i + u
            E("v_lshlrev_b32 v80, 16, v%d" % src)
            E("v_and_b32 v81, 0xffff0000, v%d" % src)
            E("v_fmac_f32 v%d, v%d, v80" % (72 + 2 * u, 64 + i))
            E("v_fmac_f32 v%d, v%d, v81" % (73 + 2 * u, 64 + i))
    E("s_nop 1")
    for k in range(8):
        E("v_add_f32_dpp v%d, v%d, v%d row_ror:4 row_mask:0xf bank_mask:0xf" % (80 + k, 72 + k, 72 + k))
    E("s_nop 1")
    for k in range(8):
        E("v_add_f32_dpp v%d, v%d, v%d row_ror:8 row_mask:0xf bank_mask:0xf" % (72 + k, 80 + k, 80 + k))
    E("v_lshrrev_b32 v14, 4, v0")
    E("v_lshlrev_b32 v14, 7, v14")
    E("v_lshl_add_u32 v14, v10, 5, v14")
    E("v_and_b32 v3, 15, v0")
    E("v_cmp_gt_u32 vcc, 4, v3")
    E("s_and_saveexec_b64 s[50:51], vcc")
    E("ds_write_b128 v14, v[72:75]")
    E("ds_write_b128 v14, v[76:79] offset:16")
    E("s_mov_b64 exec, s[50:51]")
    E("s_waitcnt lgkmcnt(0)")
    E("s_barrier")
    stamp(3)
    if OPT['stamp'] == 2:
        E("s_waitcnt vmcnt(0)")
        stamp(4)
        stamp_flush()
    E("v_cmp_gt_u32 vcc, 32, v0")
    E("s_and_saveexec_b64 s[50:51], vcc")
    E("s_cbranch_execz L_p_end")
    E("v_lshlrev_b32 v5, 2, v0")
    for r in range(16):
        E("ds_read_b32 v%d, v5 offset:%d" % (32 + r, r * 128))
    E("s_waitcnt lgkmcnt(0)")
    for r in range(1, 16):
        E("v_add_f32 v32, v32, v%d" % (32 + r))
    E("v_cvt_pk_bf16_f32 v32, v32, v32")
    E("s_lshl_b32 s41, s15, 13")
    E("s_lshl_b32 s42, s18, 6")
    E("s_add_u32 s41, s41, s42")
    E("v_lshlrev_b32 v5, 1, v0")
    E("buffer_store_short v32, v5, s[28:31], s41 offen offset:%d" % WS_Q)
    L("L_p_end")
    E("s_endpgm")

def issue(h):
    NT = " nt" if OPT['nt'] else ""
    base = SLOT + 32 * (h % NSLOT)
    if h < 2:
        E("s_mov_b32 s48, s47")
        E("s_add_u32 s49, s47, 4096")
        ks, vs = 64, 68
    else:
        n = h // 2 - 1
        st = 32768 if OPT['il'] else 8192
        E("s_add_u32 s48, s40, 0x%x" % (n * st))
        E("s_add_u32 s49, s40, 0x%x" % (n * st + 4096))
        ks, vs = 20, 24
    if h % 2 == 0:
        for t in range(2):
            for j in range(4):
                r = base + (t * 4 + j) * 4
                E("buffer_load_dwordx4 v[%d:%d], v5, s[%d:%d], s%d offen offset:%d%s" % (r, r + 3, ks, ks + 3, 48 + t, j * 64, NT))
    else:
        for t in range(2):
            for rr in range(4):
                r = base + (t * 4 + rr) * 4
                E("buffer_load_dwordx4 v[%d:%d], v6, s[%d:%d], s%d offen offset:%d%s" % (r, r + 3, vs, vs + 3, 48 + t, rr * 256, NT))

def finish_state(ab):
    E("v_mov_b32 v%d, v%d" % (TMP, LS))
    E("s_nop 1")
    E("v_permlane32_swap_b32 v%d, v%d" % (LS, TMP))
    E("v_add_f32 v%d, v%d, v%d" % (LS, LS, TMP))
    E("v_mov_b32 v%d, v%d" % (TMP, LS))
    E("s_nop 1")
    E("v_permlane16_swap_b32 v%d, v%d" % (LS, TMP))
    E("v_add_f32 v%d, v%d, v%d" % (LS, LS, TMP))
    E("v_mov_b32 v%d, v%d" % (MT, M))
    E("v_mov_b32 v%d, v%d" % (TMP, LS))
    E("s_lshl_b32 s41, s14, 11")
    E("v_lshlrev_b32 v7, 6, v4")
    E("v_lshl_add_u32 v7, v3, 4, v7")
    E("v_add_u32 v7, s41, v7")
    E("s_lshl_b32 s41, s14, 5")
    E("v_lshlrev_b32 v14, 3, v3")
    E("v_add_u32 v14, s41, v14")
    E("v_cmp_gt_u32 vcc, 4, v3")
    E("s_and_saveexec_b64 s[50:51], vcc")
    for i in range(8):
        E("ds_write_b128 v7, v[%d:%d] offset:%d" % (ACC + 4 * i, ACC + 4 * i + 3, LDS_ACC + ab * 8192 + i * 256))
    E("ds_write_b64 v14, v[%d:%d] offset:%d" % (MT, TMP, LDS_ML + ab * 128))
    E("s_mov_b64 exec, s[50:51]")

def main_loop(ntiles, tag, wo_prefetch):
    NH = 2 * ntiles
    extra = 0
    ntw = " nt" if OPT['ntw'] else ""
    for n in range(ntiles):
        C("---- tile %d" % n)
        h = 2 * n
        base = SLOT + 32 * (h % NSLOT)
        issued = min(NH, h + NSLOT)
        E("s_waitcnt vmcnt(%d)" % (8 * (issued - h - 1) + extra))
        for j in range(4):
            for t in range(2):
                r = base + (t * 4 + j) * 4
                S = S0 if t == 0 else S1
                c = "0" if j == 0 else "v[%d:%d]" % (S, S + 3)
                QQ = T if n == 0 else Q
                E("v_mfma_f32_16x16x32_bf16 v[%d:%d], v[%d:%d], v[%d:%d], %s" % (S, S + 3, r, r + 3, QQ + 4 * j, QQ + 4 * j + 3, c))
        if h + NSLOT < NH:
            issue(h + NSLOT)
        else:
            E("s_nop 7")
            E("s_nop 1")
        E("v_max3_f32 v%d, v%d, v%d, v%d" % (MT, S0, S0 + 1, S0 + 2))
        E("v_max3_f32 v%d, v%d, v%d, v%d" % (MT2, S0 + 3, S1, S1 + 1))
        E("v_max3_f32 v%d, v%d, v%d, v%d" % (MT, MT, S1 + 2, S1 + 3))
        E("v_max_f32 v%d, v%d, v%d" % (MT, MT, MT2))
        E("v_mov_b32 v%d, v%d" % (TMP, MT))
        E("s_nop 1")
        E("v_permlane32_swap_b32 v%d, v%d" % (MT, TMP))
        E("v_max_f32 v%d, v%d, v%d" % (MT, MT, TMP))
        E("v_mov_b32 v%d, v%d" % (TMP, MT))
        E("s_nop 1")
        E("v_permlane16_swap_b32 v%d, v%d" % (MT, TMP))
        E("v_max3_f32 v%d, v%d, v%d, v%d" % (MT, MT, TMP, M))
        E("v_cmp_gt_f32 vcc, v%d, v%d" % (MT, M))
        E("s_cbranch_vccz L_nors_%s_%d" % (tag, n))
        E("v_sub_f32 v%d, v%d, v%d" % (AL, M, MT))
        E("v_mul_f32 v%d, s46, v%d" % (AL, AL))
        E("v_exp_f32 v%d, v%d" % (AL, AL))
        E("s_nop 0")
        E("v_mul_f32 v%d, v%d, v%d" % (LS, LS, AL))
        for k in range(32):
            E("v_mul_f32 v%d, v%d, v%d" % (ACC + k, ACC + k, AL))
        L("L_nors_%s_%d" % (tag, n))
        E("v_mov_b32 v%d, v%d" % (M, MT))
        E("v_mul_f32 v%d, s46, v%d" % (NMC, MT))
        for k in range(8):
            E("v_fma_f32 v%d, v%d, s46, -v%d" % (S0 + k, S0 + k, NMC))
        for k in range(8):
            E("v_exp_f32 v%d, v%d" % (S0 + k, S0 + k))
        E("s_nop 0")
        for w in range(4):
            E("v_cvt_pk_bf16_f32 v%d, v%d, v%d" % (P + w, S0 + 2 * w, S0 + 2 * w + 1))
        for k in range(8):
            E("v_add_f32 v%d, v%d, v%d" % (LS, LS, S0 + k))
        h = 2 * n + 1
        base = SLOT + 32 * (h % NSLOT)
        issued = min(NH, h + NSLOT)
        E("s_waitcnt vmcnt(%d)" % (8 * (issued - h - 1) + extra))
        def perms(u):
            tb = T + 8 * (u & 1)
            for w in range(4):
                a = base + (2 * w) * 4 + u
                b = base + (2 * w + 1) * 4 + u
                E("v_perm_b32 v%d, v%d, v%d, s44" % (tb + w, b, a))
            for w in range(4):
                a = base + (2 * w) * 4 + u
                b = base + (2 * w + 1) * 4 + u
                E("v_perm_b32 v%d, v%d, v%d, s45" % (tb + 4 + w, b, a))
        def mf(u):
            tb = T + 8 * (u & 1)
            for x in range(2):
                i = 2 * u + x
                E("v_mfma_f32_16x16x32_bf16 v[%d:%d], v[%d:%d], v[%d:%d], v[%d:%d]" % (ACC + 4 * i, ACC + 4 * i + 3, tb + 4 * x, tb + 4 * x + 3, P, P + 3, ACC + 4 * i, ACC + 4 * i + 3))
        perms(0); perms(1); mf(0); perms(2); mf(1); perms(3)
        if h + NSLOT < NH:
            issue(h + NSLOT)
        elif wo_prefetch and h == 13:
            C("wo slice prefetch")
            for ii in range(8):
                E("buffer_load_dwordx4 v[%d:%d], v8, s[32:35], s%d offen offset:%d%s" % (WREG + 4 * ii, WREG + 4 * ii + 3, 56 + (ii >> 2), (ii & 3) * 1024, ntw))
            extra = 8
        mf(2)
        E("s_nop 1")
        mf(3)
        if n == 0:
            finish_state(1)
            E("s_waitcnt lgkmcnt(0)")
            init_state()
    finish_state(0)

def init_state():
    for k in range(32):
        E("v_mov_b32 v%d, 0" % (ACC + k))
    E("v_mov_b32 v%d, 0x%08x" % (M, NEGBIG))
    E("v_mov_b32 v%d, 0" % LS)

def spin(label, sleep):
    E("s_cbranch_vccz %s_done" % label)
    E("s_add_u32 s60, s60, 1")
    E("s_cmp_lt_u32 s60, 0x40000")
    E("s_cbranch_scc0 %s_done" % label)
    E("s_sleep %d" % sleep)
    E("s_branch %s" % label)
    L(label + "_done")

def gen_main():
    kbegin("main_kernel")
    CURK[0] = 1
    E("s_cmp_ge_u32 s2, 256")
    E("s_cbranch_scc1 L_end")
    E("s_load_dwordx2 s[6:7], s[0:1], 8")
    E("s_load_dwordx2 s[8:9], s[0:1], 16")
    E("s_load_dwordx2 s[12:13], s[0:1], 32")
    E("s_load_dwordx2 s[64:65], s[0:1], 48")
    E("s_load_dwordx2 s[66:67], s[0:1], 56")
    E("s_load_dwordx2 s[70:71], s[0:1], 72")
    E("s_load_dwordx2 s[72:73], s[0:1], 80")
    E("s_load_dwordx2 s[28:29], s[0:1], 96")
    E("v_lshrrev_b32 v1, 6, v0")
    E("v_and_b32 v2, 63, v0")
    E("v_readfirstlane_b32 s14, v1")
    roles()
    E("s_lshl_b32 s56, s55, 17")
    E("s_lshl_b32 s57, s54, 8")
    E("s_add_u32 s56, s56, s57")
    E("s_add_u32 s57, s56, 4096")
    E("v_and_b32 v3, 15, v2")
    E("v_lshrrev_b32 v4, 4, v2")
    E("v_lshlrev_b32 v5, 8, v3")
    E("v_lshl_add_u32 v5, v4, 4, v5")
    E("v_lshlrev_b32 v6, 10, v4")
    E("v_lshl_add_u32 v6, v3, 4, v6")
    E("s_mov_b32 s44, 0x05040100")
    E("s_mov_b32 s45, 0x07060302")
    E("s_mov_b32 s46, 0x%08x" % CS_BITS)
    E("s_lshl_b32 s40, s16, 23")
    E("s_lshl_b32 s41, s17, 15")
    E("s_lshl_b32 s42, s14, 13")
    E("s_add_u32 s47, s40, s41")
    E("s_add_u32 s47, s47, s42")
    E("s_add_u32 s47, s47, 0x%x" % (28672 * 256))
    E("s_lshl_b32 s41, s17, 18")
    E("s_lshl_b32 s42, s14, %d" % (13 if OPT['il'] else 16))
    E("s_add_u32 s40, s40, s41")
    E("s_add_u32 s40, s40, s42")
    E("s_lshl_b32 s41, s16, 10")
    E("v_add_u32 v7, s41, v5")
    E("v_mov_b32 v8, 0x80000000")
    E("v_cmp_gt_u32 vcc, 4, v3")
    E("s_nop 1")
    E("v_cndmask_b32 v7, v8, v7, vcc")
    E("v_lshrrev_b32 v8, 4, v0")
    E("v_lshlrev_b32 v8, 13, v8")
    E("v_lshl_add_u32 v8, v3, 4, v8")
    E("s_waitcnt lgkmcnt(0)")
    srd(28, WS_SIZE)
    srd(72, 2048)
    E("s_cmp_eq_u32 s52, 0")
    E("s_cselect_b64 s[32:33], s[12:13], s[70:71]")
    srd(32, 0x400000)
    E("s_mov_b64 s[20:21], s[6:7]")
    E("s_mov_b64 s[24:25], s[8:9]")
    E("s_mov_b64 s[68:69], s[66:67]")
    srd(20, 0x4000000)
    srd(24, 0x4000000)
    srd(64, 0x4000000)
    srd(68, 0x4000000)
    E("s_movk_i32 s41, 0x2000")
    if OPT['stamp'] == 1: E("v_mov_b32 v92, 0")
    stamp(0)
    for j in range(4):
        E("buffer_load_dwordx4 v[%d:%d], v7, s[28:31], s41 offen offset:%d" % (T + 4 * j, T + 4 * j + 3, WS_Q + j * 64))
    for j in range(4):
        E("buffer_load_dwordx4 v[%d:%d], v7, s[28:31], 0 offen offset:%d" % (Q + 4 * j, Q + 4 * j + 3, WS_Q + j * 64))
    for h in range(NSLOT):
        issue(h)
    init_state()
    stamp(1)
    main_loop(9, "a", True)
    stamp(3)
    E("s_waitcnt lgkmcnt(0)")
    E("s_barrier")
    E("s_lshr_b32 s15, s14, 1")
    E("v_bfe_u32 v16, v0, 4, 3")
    E("v_bfe_u32 v17, v0, 2, 2")
    E("v_and_b32 v18, 3, v0")
    E("v_lshlrev_b32 v19, 8, v16")
    E("v_lshl_add_u32 v19, v17, 6, v19")
    E("v_lshl_add_u32 v19, v18, 4, v19")
    E("s_lshl_b32 s41, s15, 13")
    E("v_add_u32 v19, s41, v19")
    E("v_lshlrev_b32 v20, 3, v18")
    E("s_lshl_b32 s41, s15, 7")
    E("v_add_u32 v22, s41, v20")
    for w in range(4):
        E("ds_read_b128 v[%d:%d], v19 offset:%d" % (32 + 4 * w, 35 + 4 * w, LDS_ACC + w * 2048))
    for w in range(4):
        E("ds_read_b64 v[%d:%d], v22 offset:%d" % (48 + 2 * w, 49 + 2 * w, LDS_ML + w * 32))
    E("s_waitcnt lgkmcnt(0)")
    E("v_max3_f32 v56, v48, v50, v52")
    E("v_max_f32 v56, v56, v54")
    for w in range(4):
        E("v_sub_f32 v%d, v%d, v56" % (58 + w, 48 + 2 * w))
        E("v_mul_f32 v%d, s46, v%d" % (58 + w, 58 + w))
        E("v_exp_f32 v%d, v%d" % (58 + w, 58 + w))
    E("s_nop 0")
    E("v_mul_f32 v57, v58, v49")
    for w in range(1, 4):
        E("v_fmac_f32 v57, v%d, v%d" % (58 + w, 49 + 2 * w))
    for r in range(4):
        E("v_mul_f32 v%d, v58, v%d" % (64 + r, 32 + r))
        for w in range(1, 4):
            E("v_fmac_f32 v%d, v%d, v%d" % (64 + r, 58 + w, 32 + 4 * w + r))
    E("s_lshl_b32 s42, s15, 8")
    E("s_add_u32 s42, s42, s2")
    E("s_lshl_b32 s41, s42, 11")
    E("s_add_u32 s41, s41, 0x%x" % WS_O)
    E("v_lshlrev_b32 v21, 9, v18")
    E("v_lshl_add_u32 v21, v16, 6, v21")
    E("v_lshl_add_u32 v21, v17, 4, v21")
    E("buffer_store_dwordx4 v[64:67], v21, s[28:31], s41 offen sc1")
    E("v_and_b32 v23, 127, v0")
    E("v_cmp_gt_u32 vcc, 4, v23")
    E("s_and_saveexec_b64 s[50:51], vcc")
    E("s_lshl_b32 s41, s42, 7")
    E("s_add_u32 s41, s41, 0x%x" % WS_ML)
    E("buffer_store_dwordx2 v[56:57], v20, s[28:31], s41 offen sc1")
    E("s_mov_b64 exec, s[50:51]")
    stamp(4)
    E("s_lshl_b32 s40, s52, 8")
    E("s_add_u32 s40, s40, s16")
    E("v_and_b32 v16, 31, v0")
    E("v_lshlrev_b32 v17, 10, v16")
    E("s_lshl_b32 s41, s40, 7")
    E("s_lshl_b32 s42, s53, 3")
    E("s_add_u32 s41, s41, s42")
    E("s_add_u32 s41, s41, 0x%x" % WS_ML)
    E("v_lshrrev_b32 v18, 5, v0")
    E("v_lshlrev_b32 v19, 16, v18")
    E("v_lshl_add_u32 v19, v16, 4, v19")
    E("s_lshl_b32 s84, s40, 11")
    E("s_lshl_b32 s42, s53, 9")
    E("s_add_u32 s84, s84, s42")
    E("s_add_u32 s84, s84, 0x%x" % WS_O)
    for u in range(1, 4):
        E("s_add_u32 s%d, s84, 0x%x" % (84 + u, u * 16384))
    E("s_mov_b32 s60, 0")
    L("L_pml")
    E("buffer_load_dwordx2 v[20:21], v17, s[28:31], s41 offen sc1")
    E("s_waitcnt vmcnt(0)")
    E("v_max_u32 v22, v20, v21")
    E("v_cmp_eq_u32 vcc, -1, v22")
    spin("L_pml", OPT['sl1'])
    L("L_po")
    for u in range(4):
        E("buffer_load_dwordx4 v[%d:%d], v19, s[28:31], s%d offen sc1" % (32 + 4 * u, 35 + 4 * u, 84 + u))
    E("s_waitcnt vmcnt(0)")
    E("v_max3_u32 v22, v32, v33, v34")
    for k in range(35, 47, 2):
        E("v_max3_u32 v22, v22, v%d, v%d" % (k, k + 1))
    E("v_max_u32 v22, v22, v47")
    E("v_cmp_eq_u32 vcc, -1, v22")
    spin("L_po", OPT['sl2'])
    stamp(5)
    E("v_mov_b32 v22, v20")
    for sh in (1, 2, 4, 8):
        E("s_nop 1")
        E("v_max_f32_dpp v22, v22, v22 row_ror:%d row_mask:0xf bank_mask:0xf" % sh)
    E("v_mov_b32 v23, v22")
    E("s_nop 1")
    E("v_permlane16_swap_b32 v22, v23")
    E("v_max_f32 v22, v22, v23")
    E("v_sub_f32 v20, v20, v22")
    E("v_mul_f32 v20, s46, v20")
    E("v_exp_f32 v20, v20")
    E("s_nop 0")
    E("v_mul_f32 v21, v20, v21")
    for sh in (1, 2, 4, 8):
        E("s_nop 1")
        E("v_add_f32_dpp v21, v21, v21 row_ror:%d row_mask:0xf bank_mask:0xf" % sh)
    E("v_mov_b32 v23, v21")
    E("s_nop 1")
    E("v_permlane16_swap_b32 v21, v23")
    E("v_add_f32 v21, v21, v23")
    E("v_rcp_f32 v21, v21")
    E("v_lshlrev_b32 v24, 4, v18")
    for u in range(4):
        E("v_add_u32 v23, %d, v24" % (4 * u))
        E("ds_bpermute_b32 v%d, v23, v20" % (64 + u))
    E("s_waitcnt lgkmcnt(0)")
    for r in range(4):
        E("v_mul_f32 v%d, v64, v%d" % (68 + r, 32 + r))
        for u in range(1, 4):
            E("v_fmac_f32 v%d, v%d, v%d" % (68 + r, 64 + u, 32 + 4 * u + r))
    for r in range(4):
        E("v_mov_b32 v%d, v%d" % (72 + r, 68 + r))
    E("s_nop 1")
    for r in range(4):
        E("v_permlane32_swap_b32 v%d, v%d" % (68 + r, 72 + r))
    for r in range(4):
        E("v_add_f32 v%d, v%d, v%d" % (68 + r, 68 + r, 72 + r))
    E("v_lshlrev_b32 v23, 9, v1")
    E("v_lshl_add_u32 v23, v16, 4, v23")
    E("ds_write_b128 v23, v[68:71] offset:%d" % LDS_T1)
    E("s_waitcnt lgkmcnt(0)")
    E("s_barrier")
    E("v_lshrrev_b32 v25, 4, v0")
    E("v_cmp_gt_u32 vcc, 128, v0")
    E("s_and_saveexec_b64 s[50:51], vcc")
    E("v_lshlrev_b32 v23, 2, v0")
    for w in range(4):
        E("ds_read_b32 v%d, v23 offset:%d" % (68 + w, LDS_T1 + w * 512))
    E("s_waitcnt lgkmcnt(0)")
    E("v_add_f32 v68, v68, v69")
    E("v_add_f32 v70, v70, v71")
    E("v_add_f32 v68, v68, v70")
    E("v_mul_f32 v68, v68, v21")
    E("v_cvt_pk_bf16_f32 v68, v68, v68")
    E("v_lshlrev_b32 v68, 16, v68")
    E("v_lshlrev_b32 v69, 3, v3")
    E("v_add_u32 v69, v69, v25")
    E("v_lshlrev_b32 v69, 2, v69")
    E("ds_write_b32 v69, v68 offset:%d" % LDS_TO)
    E("s_mov_b64 exec, s[50:51]")
    E("s_waitcnt lgkmcnt(0)")
    E("s_barrier")
    E("v_lshlrev_b32 v23, 5, v25")
    E("ds_read_b128 v[64:67], v23 offset:%d" % LDS_TO)
    E("ds_read_b128 v[68:71], v23 offset:%d" % (LDS_TO + 16))
    for k in range(8):
        E("v_mov_b32 v%d, 0" % (72 + k))
    E("s_waitcnt lgkmcnt(0)")
    for ii in range(8):
        for u in range(4):
            src = WREG + 4 * ii + u
            E("v_lshlrev_b32 v80, 16, v%d" % src)
            E("v_and_b32 v81, 0xffff0000, v%d" % src)
            E("v_fmac_f32 v%d, v%d, v80" % (72 + 2 * u, 64 + ii))
            E("v_fmac_f32 v%d, v%d, v81" % (73 + 2 * u, 64 + ii))
    for k in range(8):
        E("v_mov_b32 v%d, v%d" % (80 + k, 72 + k))
    E("s_nop 1")
    for k in range(8):
        E("v_permlane16_swap_b32 v%d, v%d" % (72 + k, 80 + k))
    for k in range(8):
        E("v_add_f32 v%d, v%d, v%d" % (72 + k, 72 + k, 80 + k))
    for k in range(8):
        E("v_mov_b32 v%d, v%d" % (80 + k, 72 + k))
    E("s_nop 1")
    for k in range(8):
        E("v_permlane32_swap_b32 v%d, v%d" % (72 + k, 80 + k))
    for k in range(8):
        E("v_add_f32 v%d, v%d, v%d" % (72 + k, 72 + k, 80 + k))
    E("v_lshlrev_b32 v23, 9, v1")
    E("v_lshl_add_u32 v23, v3, 5, v23")
    E("ds_write_b128 v23, v[72:75] offset:%d" % LDS_T3)
    E("ds_write_b128 v23, v[76:79] offset:%d" % (LDS_T3 + 16))
    E("s_waitcnt lgkmcnt(0)")
    E("s_barrier")
    E("s_lshl_b32 s40, s52, 2")
    E("s_add_u32 s40, s40, s54")
    E("s_lshl_b32 s41, s40, 14")
    E("s_add_u32 s41, s41, 0x%x" % WS_OP)
    E("s_lshl_b32 s42, s55, 9")
    E("s_add_u32 s42, s42, s41")
    E("v_cmp_gt_u32 vcc, 128, v0")
    E("s_and_saveexec_b64 s[50:51], vcc")
    E("v_lshlrev_b32 v23, 2, v0")
    for w in range(4):
        E("ds_read_b32 v%d, v23 offset:%d" % (68 + w, LDS_T3 + w * 512))
    E("s_waitcnt lgkmcnt(0)")
    E("v_add_f32 v68, v68, v69")
    E("v_add_f32 v70, v70, v71")
    E("v_add_f32 v68, v68, v70")
    E("buffer_store_dword v68, v23, s[28:31], s42 offen sc1")
    E("s_mov_b64 exec, s[50:51]")
    stamp(6)
    stamp_flush()
    E("s_lshl_b32 s43, s40, 2")
    E("s_cmp_lg_u32 s43, s55")
    E("s_cbranch_scc1 L_end")
    E("v_and_b32 v23, 127, v0")
    E("v_lshrrev_b32 v24, 7, v0")
    E("v_lshlrev_b32 v25, 13, v24")
    E("v_lshl_add_u32 v25, v23, 2, v25")
    E("s_add_u32 s42, s41, 4096")
    E("s_mov_b32 s60, 0")
    L("L_pf")
    for i in range(16):
        E("buffer_load_dword v%d, v25, s[28:31], s%d offen offset:%d sc1" % (32 + i, 41 if i < 8 else 42, (i & 7) * 512))
    E("s_waitcnt vmcnt(0)")
    E("v_max3_u32 v22, v32, v33, v34")
    for k in range(35, 47, 2):
        E("v_max3_u32 v22, v22, v%d, v%d" % (k, k + 1))
    E("v_max_u32 v22, v22, v47")
    E("v_cmp_eq_u32 vcc, -1, v22")
    spin("L_pf", OPT['sl3'])
    for i in range(1, 16):
        E("v_add_f32 v32, v32, v%d" % (32 + i))
    E("v_lshlrev_b32 v25, 2, v0")
    E("ds_write_b32 v25, v32 offset:%d" % LDS_T4)
    E("s_waitcnt lgkmcnt(0)")
    E("s_barrier")
    E("v_cmp_gt_u32 vcc, 128, v0")
    E("s_and_saveexec_b64 s[50:51], vcc")
    E("s_cbranch_execz L_end")
    E("ds_read_b32 v33, v25 offset:%d" % (LDS_T4 + 512))
    E("s_waitcnt lgkmcnt(0)")
    E("v_add_f32 v32, v32, v33")
    E("v_cvt_pk_bf16_f32 v32, v32, v32")
    E("s_lshl_b32 s43, s40, 8")
    E("v_lshlrev_b32 v25, 1, v0")
    E("buffer_store_short v32, v25, s[72:75], s43 offen")
    E("s_endpgm")
    L("L_end")
    E("s_endpgm")

def main():
    for o in sys.argv[2:]:
        k, v = o.split('=')
        assert k in OPT, k
        OPT[k] = int(v)
    out.append(HEADER.rstrip())
    out.append("; @launch kernel=pre_kernel grid=(256,1,1) block=(256,1,1) lds=2048")
    out.append("; @launch kernel=main_kernel grid=(256,1,1) block=(256,1,1) lds=%d" % LDS_TOTAL)
    out.append('.amdgcn_target "amdgcn-amd-amdhsa--gfx950"')
    out.append(".text")
    gen_pre()
    gen_main()
    out.append('.section .rodata,"a"')
    out.append(kd("pre_kernel", 128))
    out.append(kd("main_kernel", 256))
    open(sys.argv[1], 'w').write("\n".join(out) + "\n")
main()
```

```python
import struct, sys

NAME = "concat_heads__gqa_block_cached__sliding_block_cached__decode"
WS_Q = 0x0
WS_ML = 0x10000
WS_O = 0x20000
WS_OP = 0x200000
WS_SIZE = 0x400000
CS = (128.0 ** -0.5) * 1.4426950408889634
def f32bits(x): return struct.unpack('<I', struct.pack('<f', x))[0]
CS_BITS = f32bits(CS)
NEGBIG = f32bits(-1.0e30)

out = []
def E(s): out.append("    " + s)
def L(s): out.append(s + ":")
def C(s): out.append("    ; " + s)
HEADER = open('cdna_kernels/%s.s.ref' % NAME).read().split('; Override launch')[0]

def srd(s, size):
    E("s_mov_b32 s%d, 0x%x" % (s + 2, size))
    E("s_mov_b32 s%d, 0x00020000" % (s + 3))

OPT = dict(pace=1, nc=2, slq=4, il=1, prio=0, nt=1, ntw=0, stamp=0, pf=2, sl1=2, sl2=1, sl3=1)
LDS_ACC = 0
LDS_ML = 16384
LDS_T1 = 20480
LDS_TO = 22528
LDS_T3 = 24576
LDS_T4 = 26624
LDS_QP = 28672
LDS_Q = 30720
LDS_TOTAL = 32768

Q = 16; ACC = 32; S0 = 64; S1 = 68; P = 72; T = 76; SLOT = 96
M = 9; LS = 10; NMC = 11; MT = 12; TMP = 13; MT2 = 14; AL = 15
NSLOT = 5
WREG = SLOT + 32 * 3

def kbegin(name):
    out.append(".globl %s" % name)
    out.append(".p2align 8")
    out.append(".type %s,@function" % name)
    out.append("%s:" % name)

def kd(name, vgpr, sgpr=102):
    return """.p2align 6
.amdhsa_kernel %s
  .amdhsa_next_free_vgpr %d
  .amdhsa_next_free_sgpr %d
  .amdhsa_accum_offset %d
  .amdhsa_group_segment_fixed_size 0
  .amdhsa_kernarg_size 104
  .amdhsa_user_sgpr_count 2
  .amdhsa_user_sgpr_kernarg_segment_ptr 1
  .amdhsa_system_sgpr_workgroup_id_x 1
.end_amdhsa_kernel
""" % (name, vgpr, sgpr, (vgpr + 3) // 4 * 4)

CURK = [1]
def stamp(idx):
    if OPT['stamp'] != CURK[0]: return
    E("s_memrealtime s[92:93]")
    E("s_waitcnt lgkmcnt(0)")
    E("v_writelane_b32 v92, s92, %d" % idx)
def stamp_flush():
    if OPT['stamp'] != CURK[0]: return
    E("s_mov_b64 exec, -1")
    E("s_mul_i32 s92, s2, 5")
    E("s_add_u32 s92, s92, s14")
    E("s_lshl_b32 s92, s92, 8")
    E("s_add_u32 s92, s92, 0x300000")
    E("v_lshlrev_b32 v93, 2, v2")
    E("buffer_store_dword v92, v93, s[28:31], s92 offen")

def roles():
    E("s_and_b32 s16, s2, 7")
    E("s_lshr_b32 s17, s2, 3")
    E("s_lshr_b32 s52, s17, 4")
    E("s_lshr_b32 s53, s17, 2")
    E("s_and_b32 s53, s53, 3")
    E("s_and_b32 s54, s17, 3")
    E("s_lshl_b32 s55, s16, 2")
    E("s_add_u32 s55, s55, s53")

def gen_pre():
    kbegin("pre_kernel")
    CURK[0] = 2
    E("s_cmp_ge_u32 s2, 256")
    E("s_cbranch_scc1 L_p_end")
    if OPT['stamp'] == 2: E("v_mov_b32 v92, 0")
    stamp(0)
    E("s_load_dwordx2 s[4:5], s[0:1], 0")
    E("s_load_dwordx2 s[20:21], s[0:1], 8")
    E("s_load_dwordx2 s[24:25], s[0:1], 16")
    E("s_load_dwordx2 s[10:11], s[0:1], 24")
    E("s_load_dwordx2 s[62:63], s[0:1], 40")
    E("s_load_dwordx2 s[68:69], s[0:1], 64")
    E("s_load_dwordx2 s[28:29], s[0:1], 96")
    E("v_lshrrev_b32 v1, 6, v0")
    E("v_and_b32 v2, 63, v0")
    E("v_readfirstlane_b32 s14, v1")
    roles()
    E("s_lshr_b32 s15, s2, 7")
    E("s_lshl_b32 s18, s16, 4")
    E("s_and_b32 s19, s17, 15")
    E("s_or_b32 s18, s18, s19")
    E("v_and_b32 v10, 3, v0")
    E("v_lshrrev_b32 v11, 2, v0")
    E("v_lshlrev_b32 v12, 13, v11")
    E("v_lshl_add_u32 v12, v10, 4, v12")
    E("v_lshlrev_b32 v13, 1, v11")
    E("v_lshlrev_b32 v7, 4, v2")
    E("s_lshl_b32 s41, s18, 6")
    for i in range(8):
        E("s_add_u32 s%d, s41, 0x%x" % (84 + i, i * 0x80000))
    E("s_waitcnt lgkmcnt(0)")
    E("s_cmp_eq_u32 s15, 0")
    E("s_cselect_b64 s[76:77], s[4:5], s[62:63]")
    E("s_cselect_b64 s[80:81], s[10:11], s[68:69]")
    srd(76, 1024)
    srd(80, 0x400000)
    srd(28, WS_SIZE)
    srd(20, 0x4000000)
    srd(24, 0x4000000)
    ntw = " nt" if OPT['ntw'] else ""
    stamp(1)
    for i in range(8):
        E("buffer_load_dwordx4 v[%d:%d], v12, s[80:83], s%d offen%s" % (32 + 4 * i, 35 + 4 * i, 84 + i, ntw))
    for i in range(8):
        E("buffer_load_ushort v%d, v13, s[76:79], 0 offen offset:%d" % (64 + i, i * 128))
    E("s_lshl_b32 s40, s16, 23")
    E("s_lshl_b32 s41, s17, 18")
    E("s_add_u32 s40, s40, s41")
    E("s_lshl_b32 s41, s14, 16")
    E("s_add_u32 s40, s40, s41")
    pf = OPT['pf']
    for h in range(pf):
        n = h // 2
        E("s_add_u32 s48, s40, 0x%x" % (n * 8192))
        E("s_add_u32 s49, s40, 0x%x" % (n * 8192 + 4096))
        for t in range(2):
            for j in range(4):
                r = 96 + (t * 4 + j) * 4
                E("buffer_load_dwordx4 v[%d:%d], v7, s[%d:%d], s%d offen offset:%d" % (r, r + 3, 20 + 4 * (h & 1), 23 + 4 * (h & 1), 48 + t, j * 1024))
    for k in range(4):
        E("v_mov_b32 v%d, -1" % (88 + k))
    E("s_lshl_b32 s41, s2, 11")
    E("s_add_u32 s41, s41, 0x%x" % WS_O)
    E("s_cmp_eq_u32 s14, 1")
    E("s_cselect_b32 s42, 0x%x, 0" % (256 * 2048))
    E("s_add_u32 s41, s41, s42")
    E("s_cmp_gt_u32 s14, 1")
    E("s_cbranch_scc1 L_p_c2")
    E("buffer_store_dwordx4 v[88:91], v7, s[28:31], s41 offen")
    E("buffer_store_dwordx4 v[88:91], v7, s[28:31], s41 offen offset:1024")
    E("s_branch L_p_c3")
    L("L_p_c2")
    E("s_cmp_lg_u32 s14, 2")
    E("s_cbranch_scc1 L_p_c3")
    E("s_lshl_b32 s41, s52, 2")
    E("s_add_u32 s41, s41, s54")
    E("s_lshl_b32 s41, s41, 5")
    E("s_add_u32 s41, s41, s55")
    E("s_lshl_b32 s41, s41, 9")
    E("s_add_u32 s41, s41, 0x%x" % WS_OP)
    E("v_cmp_gt_u32 vcc, 32, v2")
    E("s_and_saveexec_b64 s[50:51], vcc")
    E("buffer_store_dwordx4 v[88:91], v7, s[28:31], s41 offen")
    E("v_cmp_gt_u32 vcc, 2, v2")
    E("s_and_b64 exec, exec, vcc")
    E("s_lshl_b32 s41, s2, 7")
    E("s_add_u32 s41, s41, 0x%x" % WS_ML)
    E("s_add_u32 s42, s41, 0x%x" % (256 * 128))
    E("buffer_store_dwordx4 v[88:91], v7, s[28:31], s41 offen")
    E("buffer_store_dwordx4 v[88:91], v7, s[28:31], s42 offen")
    E("s_mov_b64 exec, s[50:51]")
    L("L_p_c3")
    for k in range(8):
        E("v_mov_b32 v%d, 0" % (72 + k))
    E("s_waitcnt vmcnt(%d)" % (8 * pf))
    stamp(2)
    for i in range(8):
        E("v_lshlrev_b32 v%d, 16, v%d" % (64 + i, 64 + i))
    for i in range(8):
        for u in range(4):
            src = 32 + 4 * i + u
            E("v_lshlrev_b32 v80, 16, v%d" % src)
            E("v_and_b32 v81, 0xffff0000, v%d" % src)
            E("v_fmac_f32 v%d, v%d, v80" % (72 + 2 * u, 64 + i))
            E("v_fmac_f32 v%d, v%d, v81" % (73 + 2 * u, 64 + i))
    E("s_nop 1")
    for k in range(8):
        E("v_add_f32_dpp v%d, v%d, v%d row_ror:4 row_mask:0xf bank_mask:0xf" % (80 + k, 72 + k, 72 + k))
    E("s_nop 1")
    for k in range(8):
        E("v_add_f32_dpp v%d, v%d, v%d row_ror:8 row_mask:0xf bank_mask:0xf" % (72 + k, 80 + k, 80 + k))
    E("v_lshrrev_b32 v14, 4, v0")
    E("v_lshlrev_b32 v14, 7, v14")
    E("v_lshl_add_u32 v14, v10, 5, v14")
    E("v_and_b32 v3, 15, v0")
    E("v_cmp_gt_u32 vcc, 4, v3")
    E("s_and_saveexec_b64 s[50:51], vcc")
    E("ds_write_b128 v14, v[72:75]")
    E("ds_write_b128 v14, v[76:79] offset:16")
    E("s_mov_b64 exec, s[50:51]")
    E("s_waitcnt lgkmcnt(0)")
    E("s_barrier")
    stamp(3)
    if OPT['stamp'] == 2:
        E("s_waitcnt vmcnt(0)")
        stamp(4)
        stamp_flush()
    E("v_cmp_gt_u32 vcc, 32, v0")
    E("s_and_saveexec_b64 s[50:51], vcc")
    E("s_cbranch_execz L_p_end")
    E("v_lshlrev_b32 v5, 2, v0")
    for r in range(16):
        E("ds_read_b32 v%d, v5 offset:%d" % (32 + r, r * 128))
    E("s_waitcnt lgkmcnt(0)")
    for r in range(1, 16):
        E("v_add_f32 v32, v32, v%d" % (32 + r))
    E("v_cvt_pk_bf16_f32 v32, v32, v32")
    E("s_lshl_b32 s41, s15, 13")
    E("s_lshl_b32 s42, s18, 6")
    E("s_add_u32 s41, s41, s42")
    E("v_lshlrev_b32 v5, 1, v0")
    E("buffer_store_short v32, v5, s[28:31], s41 offen offset:%d" % WS_Q)
    L("L_p_end")
    E("s_endpgm")

def issue(h):
    NT = " nt" if OPT['nt'] else ""
    base = SLOT + 32 * (h % NSLOT)
    if h < 2:
        E("s_mov_b32 s48, s47")
        E("s_add_u32 s49, s47, 4096")
        ks, vs = 64, 68
    else:
        n = h // 2 - 1
        st = 32768 if OPT['il'] else 8192
        E("s_add_u32 s48, s40, 0x%x" % (n * st))
        E("s_add_u32 s49, s40, 0x%x" % (n * st + 4096))
        ks, vs = 20, 24
    if h % 2 == 0:
        for t in range(2):
            for j in range(4):
                r = base + (t * 4 + j) * 4
                E("buffer_load_dwordx4 v[%d:%d], v5, s[%d:%d], s%d offen offset:%d%s" % (r, r + 3, ks, ks + 3, 48 + t, j * 64, NT))
    else:
        for t in range(2):
            for rr in range(4):
                r = base + (t * 4 + rr) * 4
                E("buffer_load_dwordx4 v[%d:%d], v6, s[%d:%d], s%d offen offset:%d%s" % (r, r + 3, vs, vs + 3, 48 + t, rr * 256, NT))

def finish_state(ab):
    E("v_mov_b32 v%d, v%d" % (TMP, LS))
    E("s_nop 1")
    E("v_permlane32_swap_b32 v%d, v%d" % (LS, TMP))
    E("v_add_f32 v%d, v%d, v%d" % (LS, LS, TMP))
    E("v_mov_b32 v%d, v%d" % (TMP, LS))
    E("s_nop 1")
    E("v_permlane16_swap_b32 v%d, v%d" % (LS, TMP))
    E("v_add_f32 v%d, v%d, v%d" % (LS, LS, TMP))
    E("v_mov_b32 v%d, v%d" % (MT, M))
    E("v_mov_b32 v%d, v%d" % (TMP, LS))
    E("s_lshl_b32 s41, s14, 11")
    E("v_lshlrev_b32 v7, 6, v4")
    E("v_lshl_add_u32 v7, v3, 4, v7")
    E("v_add_u32 v7, s41, v7")
    E("s_lshl_b32 s41, s14, 5")
    E("v_lshlrev_b32 v14, 3, v3")
    E("v_add_u32 v14, s41, v14")
    E("v_cmp_gt_u32 vcc, 4, v3")
    E("s_and_saveexec_b64 s[50:51], vcc")
    for i in range(8):
        E("ds_write_b128 v7, v[%d:%d] offset:%d" % (ACC + 4 * i, ACC + 4 * i + 3, LDS_ACC + ab * 8192 + i * 256))
    E("ds_write_b64 v14, v[%d:%d] offset:%d" % (MT, TMP, LDS_ML + ab * 128))
    E("s_mov_b64 exec, s[50:51]")

def main_loop(ntiles, tag, wo_prefetch):
    NH = 2 * ntiles
    extra = 0
    ntw = " nt" if OPT['ntw'] else ""
    for n in range(ntiles):
        C("---- tile %d" % n)
        h = 2 * n
        base = SLOT + 32 * (h % NSLOT)
        issued = min(NH, h + NSLOT)
        E("s_waitcnt vmcnt(%d)" % (8 * (issued - h - 1) + extra))
        for j in range(4):
            for t in range(2):
                r = base + (t * 4 + j) * 4
                S = S0 if t == 0 else S1
                c = "0" if j == 0 else "v[%d:%d]" % (S, S + 3)
                QQ = T if n == 0 else Q
                E("v_mfma_f32_16x16x32_bf16 v[%d:%d], v[%d:%d], v[%d:%d], %s" % (S, S + 3, r, r + 3, QQ + 4 * j, QQ + 4 * j + 3, c))
        if h + NSLOT < NH:
            issue(h + NSLOT)
        else:
            E("s_nop 7")
            E("s_nop 1")
        E("v_max3_f32 v%d, v%d, v%d, v%d" % (MT, S0, S0 + 1, S0 + 2))
        E("v_max3_f32 v%d, v%d, v%d, v%d" % (MT2, S0 + 3, S1, S1 + 1))
        E("v_max3_f32 v%d, v%d, v%d, v%d" % (MT, MT, S1 + 2, S1 + 3))
        E("v_max_f32 v%d, v%d, v%d" % (MT, MT, MT2))
        E("v_mov_b32 v%d, v%d" % (TMP, MT))
        E("s_nop 1")
        E("v_permlane32_swap_b32 v%d, v%d" % (MT, TMP))
        E("v_max_f32 v%d, v%d, v%d" % (MT, MT, TMP))
        E("v_mov_b32 v%d, v%d" % (TMP, MT))
        E("s_nop 1")
        E("v_permlane16_swap_b32 v%d, v%d" % (MT, TMP))
        E("v_max3_f32 v%d, v%d, v%d, v%d" % (MT, MT, TMP, M))
        E("v_cmp_gt_f32 vcc, v%d, v%d" % (MT, M))
        E("s_cbranch_vccz L_nors_%s_%d" % (tag, n))
        E("v_sub_f32 v%d, v%d, v%d" % (AL, M, MT))
        E("v_mul_f32 v%d, s46, v%d" % (AL, AL))
        E("v_exp_f32 v%d, v%d" % (AL, AL))
        E("s_nop 0")
        E("v_mul_f32 v%d, v%d, v%d" % (LS, LS, AL))
        for k in range(32):
            E("v_mul_f32 v%d, v%d, v%d" % (ACC + k, ACC + k, AL))
        L("L_nors_%s_%d" % (tag, n))
        E("v_mov_b32 v%d, v%d" % (M, MT))
        E("v_mul_f32 v%d, s46, v%d" % (NMC, MT))
        for k in range(8):
            E("v_fma_f32 v%d, v%d, s46, -v%d" % (S0 + k, S0 + k, NMC))
        for k in range(8):
            E("v_exp_f32 v%d, v%d" % (S0 + k, S0 + k))
        E("s_nop 0")
        for w in range(4):
            E("v_cvt_pk_bf16_f32 v%d, v%d, v%d" % (P + w, S0 + 2 * w, S0 + 2 * w + 1))
        for k in range(8):
            E("v_add_f32 v%d, v%d, v%d" % (LS, LS, S0 + k))
        h = 2 * n + 1
        base = SLOT + 32 * (h % NSLOT)
        issued = min(NH, h + NSLOT)
        E("s_waitcnt vmcnt(%d)" % (8 * (issued - h - 1) + extra))
        def perms(u):
            tb = T + 8 * (u & 1)
            for w in range(4):
                a = base + (2 * w) * 4 + u
                b = base + (2 * w + 1) * 4 + u
                E("v_perm_b32 v%d, v%d, v%d, s44" % (tb + w, b, a))
            for w in range(4):
                a = base + (2 * w) * 4 + u
                b = base + (2 * w + 1) * 4 + u
                E("v_perm_b32 v%d, v%d, v%d, s45" % (tb + 4 + w, b, a))
        def mf(u):
            tb = T + 8 * (u & 1)
            for x in range(2):
                i = 2 * u + x
                E("v_mfma_f32_16x16x32_bf16 v[%d:%d], v[%d:%d], v[%d:%d], v[%d:%d]" % (ACC + 4 * i, ACC + 4 * i + 3, tb + 4 * x, tb + 4 * x + 3, P, P + 3, ACC + 4 * i, ACC + 4 * i + 3))
        perms(0); perms(1); mf(0); perms(2); mf(1); perms(3)
        if h + NSLOT < NH:
            issue(h + NSLOT)
        elif wo_prefetch and h == 13:
            C("wo slice prefetch")
            for ii in range(8):
                E("buffer_load_dwordx4 v[%d:%d], v8, s[32:35], s%d offen offset:%d%s" % (WREG + 4 * ii, WREG + 4 * ii + 3, 56 + (ii >> 2), (ii & 3) * 1024, ntw))
            extra = 8
        mf(2)
        E("s_nop 1")
        mf(3)
        if n == 0:
            finish_state(1)
            E("s_waitcnt lgkmcnt(0)")
            init_state()
    finish_state(0)

def init_state():
    for k in range(32):
        E("v_mov_b32 v%d, 0" % (ACC + k))
    E("v_mov_b32 v%d, 0x%08x" % (M, NEGBIG))
    E("v_mov_b32 v%d, 0" % LS)

def spin(label, sleep):
    E("s_cbranch_vccz %s_done" % label)
    E("s_add_u32 s60, s60, 1")
    E("s_cmp_lt_u32 s60, 0x40000")
    E("s_cbranch_scc0 %s_done" % label)
    E("s_sleep %d" % sleep)
    E("s_branch %s" % label)
    L(label + "_done")

def gen_main():
    kbegin("concat_heads__gqa_block_cached__sliding_block_cached__decode_kernel")
    CURK[0] = 1
    E("s_cmp_ge_u32 s2, 256")
    E("s_cbranch_scc1 L_end")
    E("s_load_dwordx2 s[4:5], s[0:1], 0")
    E("s_load_dwordx2 s[6:7], s[0:1], 8")
    E("s_load_dwordx2 s[8:9], s[0:1], 16")
    E("s_load_dwordx2 s[10:11], s[0:1], 24")
    E("s_load_dwordx2 s[12:13], s[0:1], 32")
    E("s_load_dwordx2 s[62:63], s[0:1], 40")
    E("s_load_dwordx2 s[64:65], s[0:1], 48")
    E("s_load_dwordx2 s[66:67], s[0:1], 56")
    E("s_load_dwordx2 s[76:77], s[0:1], 64")
    E("s_load_dwordx2 s[70:71], s[0:1], 72")
    E("s_load_dwordx2 s[72:73], s[0:1], 80")
    E("s_load_dwordx2 s[36:37], s[0:1], 88")
    E("s_load_dwordx2 s[28:29], s[0:1], 96")
    E("v_lshrrev_b32 v1, 6, v0")
    E("v_and_b32 v2, 63, v0")
    E("v_readfirstlane_b32 s14, v1")
    roles()
    E("s_lshr_b32 s15, s2, 7")
    E("s_lshl_b32 s18, s16, 4")
    E("s_and_b32 s19, s17, 15")
    E("s_or_b32 s18, s18, s19")
    E("s_lshl_b32 s56, s55, 17")
    E("s_lshl_b32 s57, s54, 8")
    E("s_add_u32 s56, s56, s57")
    E("s_add_u32 s57, s56, 4096")
    E("v_and_b32 v3, 15, v2")
    E("v_lshrrev_b32 v4, 4, v2")
    E("v_lshlrev_b32 v5, 8, v3")
    E("v_lshl_add_u32 v5, v4, 4, v5")
    E("v_lshlrev_b32 v6, 10, v4")
    E("v_lshl_add_u32 v6, v3, 4, v6")
    E("s_mov_b32 s44, 0x05040100")
    E("s_mov_b32 s45, 0x07060302")
    E("s_mov_b32 s46, 0x%08x" % CS_BITS)
    E("s_lshl_b32 s40, s16, 23")
    E("s_lshl_b32 s41, s17, 15")
    E("s_lshl_b32 s42, s14, 13")
    E("s_add_u32 s47, s40, s41")
    E("s_add_u32 s47, s47, s42")
    E("s_add_u32 s47, s47, 0x%x" % (28672 * 256))
    E("s_lshl_b32 s41, s17, 18")
    E("s_lshl_b32 s42, s14, %d" % (13 if OPT['il'] else 16))
    E("s_add_u32 s40, s40, s41")
    E("s_add_u32 s40, s40, s42")
    E("v_lshrrev_b32 v8, 4, v0")
    E("v_lshlrev_b32 v8, 13, v8")
    E("v_lshl_add_u32 v8, v3, 4, v8")
    E("v_and_b32 v10, 3, v0")
    E("v_lshrrev_b32 v11, 2, v0")
    E("v_lshlrev_b32 v12, 13, v11")
    E("v_lshl_add_u32 v12, v10, 4, v12")
    E("v_lshlrev_b32 v13, 1, v11")
    E("v_lshlrev_b32 v7, 4, v2")
    E("s_lshl_b32 s41, s18, 6")
    for i in range(8):
        E("s_add_u32 s%d, s41, 0x%x" % (84 + i, i * 0x80000))
    for k in range(4):
        E("v_mov_b32 v%d, -1" % (88 + k))
    E("s_waitcnt lgkmcnt(0)")
    srd(28, WS_SIZE)
    srd(36, 256)
    srd(72, 2048)
    E("s_cmp_eq_u32 s52, 0")
    E("s_cselect_b64 s[32:33], s[12:13], s[70:71]")
    srd(32, 0x400000)
    E("s_cmp_eq_u32 s15, 0")
    E("s_cselect_b64 s[80:81], s[10:11], s[76:77]")
    E("s_cselect_b64 s[76:77], s[4:5], s[62:63]")
    srd(76, 1024)
    srd(80, 0x400000)
    E("s_mov_b64 s[20:21], s[6:7]")
    E("s_mov_b64 s[24:25], s[8:9]")
    E("s_mov_b64 s[68:69], s[66:67]")
    srd(20, 0x4000000)
    srd(24, 0x4000000)
    srd(64, 0x4000000)
    srd(68, 0x4000000)
    if OPT['stamp'] == 1: E("v_mov_b32 v92, 0")
    stamp(0)
    ntw = " nt" if OPT['ntw'] else ""
    for i in range(8):
        E("buffer_load_dwordx4 v[%d:%d], v12, s[80:83], s%d offen%s" % (32 + 4 * i, 35 + 4 * i, 84 + i, ntw))
    for i in range(8):
        E("buffer_load_ushort v%d, v13, s[76:79], 0 offen offset:%d" % (64 + i, i * 128))
    E("s_cmp_eq_u32 s14, 0")
    E("s_cbranch_scc1 L_c0")
    E("s_cmp_eq_u32 s14, 3")
    E("s_cbranch_scc1 L_c3")
    E("s_lshl_b32 s41, s2, 11")
    E("s_add_u32 s41, s41, 0x%x" % WS_O)
    E("s_cmp_eq_u32 s14, 2")
    E("s_cselect_b32 s42, 0x%x, 0" % (256 * 2048))
    E("s_add_u32 s41, s41, s42")
    E("buffer_store_dwordx4 v[88:91], v7, s[28:31], s41 offen sc1")
    E("buffer_store_dwordx4 v[88:91], v7, s[28:31], s41 offen offset:1024 sc1")
    E("s_branch L_cd")
    L("L_c3")
    E("s_lshl_b32 s41, s52, 2")
    E("s_add_u32 s41, s41, s54")
    E("s_lshl_b32 s41, s41, 5")
    E("s_add_u32 s41, s41, s55")
    E("s_lshl_b32 s41, s41, 9")
    E("s_add_u32 s41, s41, 0x%x" % WS_OP)
    E("v_cmp_gt_u32 vcc, 32, v2")
    E("s_and_saveexec_b64 s[50:51], vcc")
    E("buffer_store_dwordx4 v[88:91], v7, s[28:31], s41 offen sc1")
    E("v_cmp_gt_u32 vcc, 2, v2")
    E("s_and_b64 exec, exec, vcc")
    E("s_lshl_b32 s41, s2, 7")
    E("s_add_u32 s41, s41, 0x%x" % WS_ML)
    E("s_add_u32 s42, s41, 0x%x" % (256 * 128))
    E("buffer_store_dwordx4 v[88:91], v7, s[28:31], s41 offen sc1")
    E("buffer_store_dwordx4 v[88:91], v7, s[28:31], s42 offen sc1")
    E("s_mov_b64 exec, s[50:51]")
    E("s_branch L_cd")
    L("L_c0")
    E("s_setprio 3")
    E("v_mov_b32 v14, 192")
    E("buffer_load_dword v15, v14, s[36:39], 0 offen sc1")
    L("L_cd")
    for h in range(OPT['pace']):
        issue(h)
    for k in range(8):
        E("v_mov_b32 v%d, 0" % (72 + k))
    E("s_waitcnt vmcnt(%d)" % (8 * OPT['pace']))
    for i in range(8):
        E("v_lshlrev_b32 v%d, 16, v%d" % (64 + i, 64 + i))
    for i in range(8):
        for u in range(4):
            src = 32 + 4 * i + u
            E("v_lshlrev_b32 v80, 16, v%d" % src)
            E("v_and_b32 v81, 0xffff0000, v%d" % src)
            E("v_fmac_f32 v%d, v%d, v80" % (72 + 2 * u, 64 + i))
            E("v_fmac_f32 v%d, v%d, v81" % (73 + 2 * u, 64 + i))
    E("s_nop 1")
    for k in range(8):
        E("v_add_f32_dpp v%d, v%d, v%d row_ror:4 row_mask:0xf bank_mask:0xf" % (80 + k, 72 + k, 72 + k))
    E("s_nop 1")
    for k in range(8):
        E("v_add_f32_dpp v%d, v%d, v%d row_ror:8 row_mask:0xf bank_mask:0xf" % (72 + k, 80 + k, 80 + k))
    E("v_lshrrev_b32 v14, 4, v0")
    E("v_lshlrev_b32 v14, 7, v14")
    E("v_lshl_add_u32 v14, v10, 5, v14")
    E("v_cmp_gt_u32 vcc, 4, v3")
    E("s_and_saveexec_b64 s[50:51], vcc")
    E("ds_write_b128 v14, v[72:75] offset:%d" % LDS_QP)
    E("ds_write_b128 v14, v[76:79] offset:%d" % (LDS_QP + 16))
    E("s_mov_b64 exec, s[50:51]")
    E("s_waitcnt lgkmcnt(0)")
    stamp(1)
    E("s_barrier")
    E("s_cmp_eq_u32 s14, 0")
    E("s_cbranch_scc1 L_helper")
    for h in range(OPT['pace'], NSLOT):
        E("s_waitcnt vmcnt(%d)" % (8 * (OPT['pace'] - 1)))
        issue(h)
    E("s_barrier")
    E("s_branch L_go")
    L("L_helper")
    E("v_cmp_gt_u32 vcc, 32, v2")
    E("s_and_saveexec_b64 s[50:51], vcc")
    E("v_lshlrev_b32 v14, 2, v2")
    for r in range(16):
        E("ds_read_b32 v%d, v14 offset:%d" % (32 + r, LDS_QP + r * 128))
    E("s_waitcnt lgkmcnt(0)")
    for r in range(1, 16):
        E("v_add_f32 v32, v32, v%d" % (32 + r))
    E("v_cvt_pk_bf16_f32 v32, v32, v32")
    E("s_lshl_b32 s41, s15, 14")
    E("s_lshl_b32 s42, s18, 7")
    E("s_add_u32 s41, s41, s42")
    E("v_lshlrev_b32 v14, 1, v2")
    E("buffer_store_short v32, v14, s[28:31], s41 offen offset:%d sc1" % WS_Q)
    E("s_mov_b64 exec, s[50:51]")
    E("s_waitcnt vmcnt(0)")
    stamp(2)
    NC = OPT['nc']
    if NC == 1:
        E("s_mov_b32 s41, 0")
        E("s_movk_i32 s42, 255")
    elif NC == 2:
        E("s_and_b32 s41, s2, 1")
        E("s_lshl_b32 s41, s41, 6")
        E("s_movk_i32 s42, 127")
    else:
        raise Exception
    E("v_cmp_eq_u32 vcc, 0, v2")
    E("s_and_saveexec_b64 s[50:51], vcc")
    E("v_mov_b32 v14, s41")
    E("v_mov_b32 v15, 1")
    E("buffer_atomic_add v15, v14, s[36:39], 0 offen sc0 sc1")
    E("s_waitcnt vmcnt(0)")
    E("v_readfirstlane_b32 s43, v15")
    E("s_cmp_lg_u32 s43, s42")
    E("s_cbranch_scc1 L_notlast")
    E("v_mov_b32 v14, 192")
    E("v_mov_b32 v15, 1")
    E("buffer_atomic_add v15, v14, s[36:39], 0 offen sc1")
    L("L_notlast")
    E("s_mov_b64 exec, s[50:51]")
    stamp(7)
    E("s_mov_b32 s60, 0")
    E("v_mov_b32 v14, 192")
    L("L_pq")
    E("buffer_load_dword v15, v14, s[36:39], 0 offen sc1")
    E("s_waitcnt vmcnt(0)")
    E("v_cmp_gt_u32 vcc, %d, v15" % NC)
    spin("L_pq", OPT['slq'])
    stamp(8)
    E("v_lshrrev_b32 v14, 2, v2")
    E("v_lshlrev_b32 v14, 7, v14")
    E("v_and_b32 v15, 3, v2")
    E("v_lshl_add_u32 v14, v15, 4, v14")
    E("s_lshl_b32 s41, s16, 11")
    E("s_add_u32 s42, s41, 16384")
    E("buffer_load_dwordx4 v[64:67], v14, s[28:31], s41 offen offset:%d sc1" % WS_Q)
    E("buffer_load_dwordx4 v[68:71], v14, s[28:31], s42 offen offset:%d sc1" % WS_Q)
    E("s_waitcnt vmcnt(0)")
    E("ds_write_b128 v7, v[64:67] offset:%d" % LDS_Q)
    E("ds_write_b128 v7, v[68:71] offset:%d" % (LDS_Q + 1024))
    E("s_waitcnt lgkmcnt(0)")
    E("s_setprio 0")
    E("s_barrier")
    for h in range(OPT['pace'], NSLOT):
        issue(h)
    L("L_go")
    stamp(9)
    for k in range(16):
        E("v_mov_b32 v%d, 0" % (Q + k))
        E("v_mov_b32 v%d, 0" % (T + k))
    E("v_cmp_gt_u32 vcc, 4, v3")
    E("s_and_saveexec_b64 s[50:51], vcc")
    for j in range(4):
        E("ds_read_b128 v[%d:%d], v5 offset:%d" % (Q + 4 * j, Q + 4 * j + 3, LDS_Q + j * 64))
        E("ds_read_b128 v[%d:%d], v5 offset:%d" % (T + 4 * j, T + 4 * j + 3, LDS_Q + 1024 + j * 64))
    E("s_mov_b64 exec, s[50:51]")
    init_state()
    E("s_waitcnt lgkmcnt(0)")
    main_loop(9, "a", True)
    stamp(3)
    E("s_waitcnt lgkmcnt(0)")
    E("s_barrier")
    E("s_lshr_b32 s15, s14, 1")
    E("v_bfe_u32 v16, v0, 4, 3")
    E("v_bfe_u32 v17, v0, 2, 2")
    E("v_and_b32 v18, 3, v0")
    E("v_lshlrev_b32 v19, 8, v16")
    E("v_lshl_add_u32 v19, v17, 6, v19")
    E("v_lshl_add_u32 v19, v18, 4, v19")
    E("s_lshl_b32 s41, s15, 13")
    E("v_add_u32 v19, s41, v19")
    E("v_lshlrev_b32 v20, 3, v18")
    E("s_lshl_b32 s41, s15, 7")
    E("v_add_u32 v22, s41, v20")
    for w in range(4):
        E("ds_read_b128 v[%d:%d], v19 offset:%d" % (32 + 4 * w, 35 + 4 * w, LDS_ACC + w * 2048))
    for w in range(4):
        E("ds_read_b64 v[%d:%d], v22 offset:%d" % (48 + 2 * w, 49 + 2 * w, LDS_ML + w * 32))
    E("s_waitcnt lgkmcnt(0)")
    E("v_max3_f32 v56, v48, v50, v52")
    E("v_max_f32 v56, v56, v54")
    for w in range(4):
        E("v_sub_f32 v%d, v%d, v56" % (58 + w, 48 + 2 * w))
        E("v_mul_f32 v%d, s46, v%d" % (58 + w, 58 + w))
        E("v_exp_f32 v%d, v%d" % (58 + w, 58 + w))
    E("s_nop 0")
    E("v_mul_f32 v57, v58, v49")
    for w in range(1, 4):
        E("v_fmac_f32 v57, v%d, v%d" % (58 + w, 49 + 2 * w))
    for r in range(4):
        E("v_mul_f32 v%d, v58, v%d" % (64 + r, 32 + r))
        for w in range(1, 4):
            E("v_fmac_f32 v%d, v%d, v%d" % (64 + r, 58 + w, 32 + 4 * w + r))
    E("s_lshl_b32 s42, s15, 8")
    E("s_add_u32 s42, s42, s2")
    E("s_lshl_b32 s41, s42, 11")
    E("s_add_u32 s41, s41, 0x%x" % WS_O)
    E("v_lshlrev_b32 v21, 9, v18")
    E("v_lshl_add_u32 v21, v16, 6, v21")
    E("v_lshl_add_u32 v21, v17, 4, v21")
    E("buffer_store_dwordx4 v[64:67], v21, s[28:31], s41 offen sc1")
    E("v_and_b32 v23, 127, v0")
    E("v_cmp_gt_u32 vcc, 4, v23")
    E("s_and_saveexec_b64 s[50:51], vcc")
    E("s_lshl_b32 s41, s42, 7")
    E("s_add_u32 s41, s41, 0x%x" % WS_ML)
    E("buffer_store_dwordx2 v[56:57], v20, s[28:31], s41 offen sc1")
    E("s_mov_b64 exec, s[50:51]")
    stamp(4)
    E("s_lshl_b32 s40, s52, 8")
    E("s_add_u32 s40, s40, s16")
    E("v_and_b32 v16, 31, v0")
    E("v_lshlrev_b32 v17, 10, v16")
    E("s_lshl_b32 s41, s40, 7")
    E("s_lshl_b32 s42, s53, 3")
    E("s_add_u32 s41, s41, s42")
    E("s_add_u32 s41, s41, 0x%x" % WS_ML)
    E("v_lshrrev_b32 v18, 5, v0")
    E("v_lshlrev_b32 v19, 16, v18")
    E("v_lshl_add_u32 v19, v16, 4, v19")
    E("s_lshl_b32 s84, s40, 11")
    E("s_lshl_b32 s42, s53, 9")
    E("s_add_u32 s84, s84, s42")
    E("s_add_u32 s84, s84, 0x%x" % WS_O)
    for u in range(1, 4):
        E("s_add_u32 s%d, s84, 0x%x" % (84 + u, u * 16384))
    E("s_mov_b32 s60, 0")
    L("L_pml")
    E("buffer_load_dwordx2 v[20:21], v17, s[28:31], s41 offen sc1")
    E("s_waitcnt vmcnt(0)")
    E("v_max_u32 v22, v20, v21")
    E("v_cmp_eq_u32 vcc, -1, v22")
    spin("L_pml", OPT['sl1'])
    L("L_po")
    for u in range(4):
        E("buffer_load_dwordx4 v[%d:%d], v19, s[28:31], s%d offen sc1" % (32 + 4 * u, 35 + 4 * u, 84 + u))
    E("s_waitcnt vmcnt(0)")
    E("v_max3_u32 v22, v32, v33, v34")
    for k in range(35, 47, 2):
        E("v_max3_u32 v22, v22, v%d, v%d" % (k, k + 1))
    E("v_max_u32 v22, v22, v47")
    E("v_cmp_eq_u32 vcc, -1, v22")
    spin("L_po", OPT['sl2'])
    stamp(5)
    E("v_mov_b32 v22, v20")
    for sh in (1, 2, 4, 8):
        E("s_nop 1")
        E("v_max_f32_dpp v22, v22, v22 row_ror:%d row_mask:0xf bank_mask:0xf" % sh)
    E("v_mov_b32 v23, v22")
    E("s_nop 1")
    E("v_permlane16_swap_b32 v22, v23")
    E("v_max_f32 v22, v22, v23")
    E("v_sub_f32 v20, v20, v22")
    E("v_mul_f32 v20, s46, v20")
    E("v_exp_f32 v20, v20")
    E("s_nop 0")
    E("v_mul_f32 v21, v20, v21")
    for sh in (1, 2, 4, 8):
        E("s_nop 1")
        E("v_add_f32_dpp v21, v21, v21 row_ror:%d row_mask:0xf bank_mask:0xf" % sh)
    E("v_mov_b32 v23, v21")
    E("s_nop 1")
    E("v_permlane16_swap_b32 v21, v23")
    E("v_add_f32 v21, v21, v23")
    E("v_rcp_f32 v21, v21")
    E("v_lshlrev_b32 v24, 4, v18")
    for u in range(4):
        E("v_add_u32 v23, %d, v24" % (4 * u))
        E("ds_bpermute_b32 v%d, v23, v20" % (64 + u))
    E("s_waitcnt lgkmcnt(0)")
    for r in range(4):
        E("v_mul_f32 v%d, v64, v%d" % (68 + r, 32 + r))
        for u in range(1, 4):
            E("v_fmac_f32 v%d, v%d, v%d" % (68 + r, 64 + u, 32 + 4 * u + r))
    for r in range(4):
        E("v_mov_b32 v%d, v%d" % (72 + r, 68 + r))
    E("s_nop 1")
    for r in range(4):
        E("v_permlane32_swap_b32 v%d, v%d" % (68 + r, 72 + r))
    for r in range(4):
        E("v_add_f32 v%d, v%d, v%d" % (68 + r, 68 + r, 72 + r))
    E("v_lshlrev_b32 v23, 9, v1")
    E("v_lshl_add_u32 v23, v16, 4, v23")
    E("ds_write_b128 v23, v[68:71] offset:%d" % LDS_T1)
    E("s_waitcnt lgkmcnt(0)")
    E("s_barrier")
    E("v_lshrrev_b32 v25, 4, v0")
    E("v_cmp_gt_u32 vcc, 128, v0")
    E("s_and_saveexec_b64 s[50:51], vcc")
    E("v_lshlrev_b32 v23, 2, v0")
    for w in range(4):
        E("ds_read_b32 v%d, v23 offset:%d" % (68 + w, LDS_T1 + w * 512))
    E("s_waitcnt lgkmcnt(0)")
    E("v_add_f32 v68, v68, v69")
    E("v_add_f32 v70, v70, v71")
    E("v_add_f32 v68, v68, v70")
    E("v_mul_f32 v68, v68, v21")
    E("v_cvt_pk_bf16_f32 v68, v68, v68")
    E("v_lshlrev_b32 v68, 16, v68")
    E("v_lshlrev_b32 v69, 3, v3")
    E("v_add_u32 v69, v69, v25")
    E("v_lshlrev_b32 v69, 2, v69")
    E("ds_write_b32 v69, v68 offset:%d" % LDS_TO)
    E("s_mov_b64 exec, s[50:51]")
    E("s_waitcnt lgkmcnt(0)")
    E("s_barrier")
    E("v_lshlrev_b32 v23, 5, v25")
    E("ds_read_b128 v[64:67], v23 offset:%d" % LDS_TO)
    E("ds_read_b128 v[68:71], v23 offset:%d" % (LDS_TO + 16))
    for k in range(8):
        E("v_mov_b32 v%d, 0" % (72 + k))
    E("s_waitcnt lgkmcnt(0)")
    for ii in range(8):
        for u in range(4):
            src = WREG + 4 * ii + u
            E("v_lshlrev_b32 v80, 16, v%d" % src)
            E("v_and_b32 v81, 0xffff0000, v%d" % src)
            E("v_fmac_f32 v%d, v%d, v80" % (72 + 2 * u, 64 + ii))
            E("v_fmac_f32 v%d, v%d, v81" % (73 + 2 * u, 64 + ii))
    for k in range(8):
        E("v_mov_b32 v%d, v%d" % (80 + k, 72 + k))
    E("s_nop 1")
    for k in range(8):
        E("v_permlane16_swap_b32 v%d, v%d" % (72 + k, 80 + k))
    for k in range(8):
        E("v_add_f32 v%d, v%d, v%d" % (72 + k, 72 + k, 80 + k))
    for k in range(8):
        E("v_mov_b32 v%d, v%d" % (80 + k, 72 + k))
    E("s_nop 1")
    for k in range(8):
        E("v_permlane32_swap_b32 v%d, v%d" % (72 + k, 80 + k))
    for k in range(8):
        E("v_add_f32 v%d, v%d, v%d" % (72 + k, 72 + k, 80 + k))
    E("v_lshlrev_b32 v23, 9, v1")
    E("v_lshl_add_u32 v23, v3, 5, v23")
    E("ds_write_b128 v23, v[72:75] offset:%d" % LDS_T3)
    E("ds_write_b128 v23, v[76:79] offset:%d" % (LDS_T3 + 16))
    E("s_waitcnt lgkmcnt(0)")
    E("s_barrier")
    E("s_lshl_b32 s40, s52, 2")
    E("s_add_u32 s40, s40, s54")
    E("s_lshl_b32 s41, s40, 14")
    E("s_add_u32 s41, s41, 0x%x" % WS_OP)
    E("s_lshl_b32 s42, s55, 9")
    E("s_add_u32 s42, s42, s41")
    E("v_cmp_gt_u32 vcc, 128, v0")
    E("s_and_saveexec_b64 s[50:51], vcc")
    E("v_lshlrev_b32 v23, 2, v0")
    for w in range(4):
        E("ds_read_b32 v%d, v23 offset:%d" % (68 + w, LDS_T3 + w * 512))
    E("s_waitcnt lgkmcnt(0)")
    E("v_add_f32 v68, v68, v69")
    E("v_add_f32 v70, v70, v71")
    E("v_add_f32 v68, v68, v70")
    E("buffer_store_dword v68, v23, s[28:31], s42 offen sc1")
    E("s_mov_b64 exec, s[50:51]")
    stamp(6)
    stamp_flush()
    E("s_lshl_b32 s43, s40, 2")
    E("s_cmp_lg_u32 s43, s55")
    E("s_cbranch_scc1 L_end")
    E("v_and_b32 v23, 127, v0")
    E("v_lshrrev_b32 v24, 7, v0")
    E("v_lshlrev_b32 v25, 13, v24")
    E("v_lshl_add_u32 v25, v23, 2, v25")
    E("s_add_u32 s42, s41, 4096")
    E("s_mov_b32 s60, 0")
    L("L_pf")
    for i in range(16):
        E("buffer_load_dword v%d, v25, s[28:31], s%d offen offset:%d sc1" % (32 + i, 41 if i < 8 else 42, (i & 7) * 512))
    E("s_waitcnt vmcnt(0)")
    E("v_max3_u32 v22, v32, v33, v34")
    for k in range(35, 47, 2):
        E("v_max3_u32 v22, v22, v%d, v%d" % (k, k + 1))
    E("v_max_u32 v22, v22, v47")
    E("v_cmp_eq_u32 vcc, -1, v22")
    spin("L_pf", OPT['sl3'])
    for i in range(1, 16):
        E("v_add_f32 v32, v32, v%d" % (32 + i))
    E("v_lshlrev_b32 v25, 2, v0")
    E("ds_write_b32 v25, v32 offset:%d" % LDS_T4)
    E("s_waitcnt lgkmcnt(0)")
    E("s_barrier")
    E("v_cmp_gt_u32 vcc, 128, v0")
    E("s_and_saveexec_b64 s[50:51], vcc")
    E("s_cbranch_execz L_end")
    E("ds_read_b32 v33, v25 offset:%d" % (LDS_T4 + 512))
    E("s_waitcnt lgkmcnt(0)")
    E("v_add_f32 v32, v32, v33")
    E("v_cvt_pk_bf16_f32 v32, v32, v32")
    E("s_lshl_b32 s43, s40, 8")
    E("v_lshlrev_b32 v25, 1, v0")
    E("buffer_store_short v32, v25, s[72:75], s43 offen")
    E("s_endpgm")
    L("L_end")
    E("s_endpgm")

def main():
    for o in sys.argv[2:]:
        k, v = o.split('=')
        assert k in OPT, k
        OPT[k] = int(v)
    out.append(HEADER.rstrip())
    out.append("; @launch grid=(256,1,1) block=(256,1,1) lds=%d" % LDS_TOTAL)
    out.append('.amdgcn_target "amdgcn-amd-amdhsa--gfx950"')
    out.append(".text")
    gen_main()
    out.append('.section .rodata,"a"')
    out.append(kd("concat_heads__gqa_block_cached__sliding_block_cached__decode_kernel", 256))
    open(sys.argv[1], 'w').write("\n".join(out) + "\n")
main()
```

```python
import struct, sys

NAME = "concat_heads__gqa_block_cached__sliding_block_cached__decode"
WS_Q = 0x0
WS_ML = 0x10000
WS_O = 0x20000
WS_OP = 0x200000
WS_SIZE = 0x400000
CS = (128.0 ** -0.5) * 1.4426950408889634
def f32bits(x): return struct.unpack('<I', struct.pack('<f', x))[0]
CS_BITS = f32bits(CS)
NEGBIG = f32bits(-1.0e30)

out = []
def E(s): out.append("    " + s)
def L(s): out.append(s + ":")
def C(s): out.append("    ; " + s)
HEADER = open('cdna_kernels/%s.s.ref' % NAME).read().split('; Override launch')[0]

def srd(s, size):
    E("s_mov_b32 s%d, 0x%x" % (s + 2, size))
    E("s_mov_b32 s%d, 0x00020000" % (s + 3))

OPT = dict(direct=0, pace=1, nc=2, slq=4, il=1, prio=0, nt=1, ntw=0, stamp=0, pf=2, sl1=2, sl2=1, sl3=1)
LDS_ACC = 0
LDS_ML = 16384
LDS_T1 = 20480
LDS_TO = 22528
LDS_T3 = 24576
LDS_T4 = 26624
LDS_QP = 28672
LDS_Q = 30720
LDS_TOTAL = 32768

Q = 16; ACC = 32; S0 = 64; S1 = 68; P = 72; T = 76; SLOT = 96
M = 9; LS = 10; NMC = 11; MT = 12; TMP = 13; MT2 = 14; AL = 15
NSLOT = 5
WREG = SLOT + 32 * 3

def kbegin(name):
    out.append(".globl %s" % name)
    out.append(".p2align 8")
    out.append(".type %s,@function" % name)
    out.append("%s:" % name)

def kd(name, vgpr, sgpr=102):
    return """.p2align 6
.amdhsa_kernel %s
  .amdhsa_next_free_vgpr %d
  .amdhsa_next_free_sgpr %d
  .amdhsa_accum_offset %d
  .amdhsa_group_segment_fixed_size 0
  .amdhsa_kernarg_size 104
  .amdhsa_user_sgpr_count 2
  .amdhsa_user_sgpr_kernarg_segment_ptr 1
  .amdhsa_system_sgpr_workgroup_id_x 1
.end_amdhsa_kernel
""" % (name, vgpr, sgpr, (vgpr + 3) // 4 * 4)

CURK = [1]
def stamp(idx):
    if OPT['stamp'] != CURK[0]: return
    E("s_memrealtime s[92:93]")
    E("s_waitcnt lgkmcnt(0)")
    E("v_writelane_b32 v92, s92, %d" % idx)
def stamp_flush():
    if OPT['stamp'] != CURK[0]: return
    E("s_mov_b64 exec, -1")
    E("s_mul_i32 s92, s2, 5")
    E("s_add_u32 s92, s92, s14")
    E("s_lshl_b32 s92, s92, 8")
    E("s_add_u32 s92, s92, 0x300000")
    E("v_lshlrev_b32 v93, 2, v2")
    E("buffer_store_dword v92, v93, s[28:31], s92 offen")

def roles():
    E("s_and_b32 s16, s2, 7")
    E("s_lshr_b32 s17, s2, 3")
    E("s_lshr_b32 s52, s17, 4")
    E("s_lshr_b32 s53, s17, 2")
    E("s_and_b32 s53, s53, 3")
    E("s_and_b32 s54, s17, 3")
    E("s_lshl_b32 s55, s16, 2")
    E("s_add_u32 s55, s55, s53")

def gen_pre():
    kbegin("pre_kernel")
    CURK[0] = 2
    E("s_cmp_ge_u32 s2, 256")
    E("s_cbranch_scc1 L_p_end")
    if OPT['stamp'] == 2: E("v_mov_b32 v92, 0")
    stamp(0)
    E("s_load_dwordx2 s[4:5], s[0:1], 0")
    E("s_load_dwordx2 s[20:21], s[0:1], 8")
    E("s_load_dwordx2 s[24:25], s[0:1], 16")
    E("s_load_dwordx2 s[10:11], s[0:1], 24")
    E("s_load_dwordx2 s[62:63], s[0:1], 40")
    E("s_load_dwordx2 s[68:69], s[0:1], 64")
    E("s_load_dwordx2 s[28:29], s[0:1], 96")
    E("v_lshrrev_b32 v1, 6, v0")
    E("v_and_b32 v2, 63, v0")
    E("v_readfirstlane_b32 s14, v1")
    roles()
    E("s_lshr_b32 s15, s2, 7")
    E("s_lshl_b32 s18, s16, 4")
    E("s_and_b32 s19, s17, 15")
    E("s_or_b32 s18, s18, s19")
    E("v_and_b32 v10, 3, v0")
    E("v_lshrrev_b32 v11, 2, v0")
    E("v_lshlrev_b32 v12, 13, v11")
    E("v_lshl_add_u32 v12, v10, 4, v12")
    E("v_lshlrev_b32 v13, 1, v11")
    E("v_lshlrev_b32 v7, 4, v2")
    E("s_lshl_b32 s41, s18, 6")
    for i in range(8):
        E("s_add_u32 s%d, s41, 0x%x" % (84 + i, i * 0x80000))
    E("s_waitcnt lgkmcnt(0)")
    E("s_cmp_eq_u32 s15, 0")
    E("s_cselect_b64 s[76:77], s[4:5], s[62:63]")
    E("s_cselect_b64 s[80:81], s[10:11], s[68:69]")
    srd(76, 1024)
    srd(80, 0x400000)
    srd(28, WS_SIZE)
    srd(20, 0x4000000)
    srd(24, 0x4000000)
    ntw = " nt" if OPT['ntw'] else ""
    stamp(1)
    for i in range(8):
        E("buffer_load_dwordx4 v[%d:%d], v12, s[80:83], s%d offen%s" % (32 + 4 * i, 35 + 4 * i, 84 + i, ntw))
    for i in range(8):
        E("buffer_load_ushort v%d, v13, s[76:79], 0 offen offset:%d" % (64 + i, i * 128))
    E("s_lshl_b32 s40, s16, 23")
    E("s_lshl_b32 s41, s17, 18")
    E("s_add_u32 s40, s40, s41")
    E("s_lshl_b32 s41, s14, 16")
    E("s_add_u32 s40, s40, s41")
    pf = OPT['pf']
    for h in range(pf):
        n = h // 2
        E("s_add_u32 s48, s40, 0x%x" % (n * 8192))
        E("s_add_u32 s49, s40, 0x%x" % (n * 8192 + 4096))
        for t in range(2):
            for j in range(4):
                r = 96 + (t * 4 + j) * 4
                E("buffer_load_dwordx4 v[%d:%d], v7, s[%d:%d], s%d offen offset:%d" % (r, r + 3, 20 + 4 * (h & 1), 23 + 4 * (h & 1), 48 + t, j * 1024))
    for k in range(4):
        E("v_mov_b32 v%d, -1" % (88 + k))
    E("s_lshl_b32 s41, s2, 11")
    E("s_add_u32 s41, s41, 0x%x" % WS_O)
    E("s_cmp_eq_u32 s14, 1")
    E("s_cselect_b32 s42, 0x%x, 0" % (256 * 2048))
    E("s_add_u32 s41, s41, s42")
    E("s_cmp_gt_u32 s14, 1")
    E("s_cbranch_scc1 L_p_c2")
    E("buffer_store_dwordx4 v[88:91], v7, s[28:31], s41 offen")
    E("buffer_store_dwordx4 v[88:91], v7, s[28:31], s41 offen offset:1024")
    E("s_branch L_p_c3")
    L("L_p_c2")
    E("s_cmp_lg_u32 s14, 2")
    E("s_cbranch_scc1 L_p_c3")
    E("s_lshl_b32 s41, s52, 2")
    E("s_add_u32 s41, s41, s54")
    E("s_lshl_b32 s41, s41, 5")
    E("s_add_u32 s41, s41, s55")
    E("s_lshl_b32 s41, s41, 9")
    E("s_add_u32 s41, s41, 0x%x" % WS_OP)
    E("v_cmp_gt_u32 vcc, 32, v2")
    E("s_and_saveexec_b64 s[50:51], vcc")
    E("buffer_store_dwordx4 v[88:91], v7, s[28:31], s41 offen")
    E("v_cmp_gt_u32 vcc, 2, v2")
    E("s_and_b64 exec, exec, vcc")
    E("s_lshl_b32 s41, s2, 7")
    E("s_add_u32 s41, s41, 0x%x" % WS_ML)
    E("s_add_u32 s42, s41, 0x%x" % (256 * 128))
    E("buffer_store_dwordx4 v[88:91], v7, s[28:31], s41 offen")
    E("buffer_store_dwordx4 v[88:91], v7, s[28:31], s42 offen")
    E("s_mov_b64 exec, s[50:51]")
    L("L_p_c3")
    for k in range(8):
        E("v_mov_b32 v%d, 0" % (72 + k))
    E("s_waitcnt vmcnt(%d)" % (8 * pf))
    stamp(2)
    for i in range(8):
        E("v_lshlrev_b32 v%d, 16, v%d" % (64 + i, 64 + i))
    for i in range(8):
        for u in range(4):
            src = 32 + 4 * i + u
            E("v_lshlrev_b32 v80, 16, v%d" % src)
            E("v_and_b32 v81, 0xffff0000, v%d" % src)
            E("v_fmac_f32 v%d, v%d, v80" % (72 + 2 * u, 64 + i))
            E("v_fmac_f32 v%d, v%d, v81" % (73 + 2 * u, 64 + i))
    E("s_nop 1")
    for k in range(8):
        E("v_add_f32_dpp v%d, v%d, v%d row_ror:4 row_mask:0xf bank_mask:0xf" % (80 + k, 72 + k, 72 + k))
    E("s_nop 1")
    for k in range(8):
        E("v_add_f32_dpp v%d, v%d, v%d row_ror:8 row_mask:0xf bank_mask:0xf" % (72 + k, 80 + k, 80 + k))
    E("v_lshrrev_b32 v14, 4, v0")
    E("v_lshlrev_b32 v14, 7, v14")
    E("v_lshl_add_u32 v14, v10, 5, v14")
    E("v_and_b32 v3, 15, v0")
    E("v_cmp_gt_u32 vcc, 4, v3")
    E("s_and_saveexec_b64 s[50:51], vcc")
    E("ds_write_b128 v14, v[72:75]")
    E("ds_write_b128 v14, v[76:79] offset:16")
    E("s_mov_b64 exec, s[50:51]")
    E("s_waitcnt lgkmcnt(0)")
    E("s_barrier")
    stamp(3)
    if OPT['stamp'] == 2:
        E("s_waitcnt vmcnt(0)")
        stamp(4)
        stamp_flush()
    E("v_cmp_gt_u32 vcc, 32, v0")
    E("s_and_saveexec_b64 s[50:51], vcc")
    E("s_cbranch_execz L_p_end")
    E("v_lshlrev_b32 v5, 2, v0")
    for r in range(16):
        E("ds_read_b32 v%d, v5 offset:%d" % (32 + r, r * 128))
    E("s_waitcnt lgkmcnt(0)")
    for r in range(1, 16):
        E("v_add_f32 v32, v32, v%d" % (32 + r))
    E("v_cvt_pk_bf16_f32 v32, v32, v32")
    E("s_lshl_b32 s41, s15, 13")
    E("s_lshl_b32 s42, s18, 6")
    E("s_add_u32 s41, s41, s42")
    E("v_lshlrev_b32 v5, 1, v0")
    E("buffer_store_short v32, v5, s[28:31], s41 offen offset:%d" % WS_Q)
    L("L_p_end")
    E("s_endpgm")

def issue(h):
    NT = " nt" if OPT['nt'] else ""
    base = SLOT + 32 * (h % NSLOT)
    if h < 2:
        E("s_mov_b32 s48, s47")
        E("s_add_u32 s49, s47, 4096")
        ks, vs = 64, 68
    else:
        n = h // 2 - 1
        st = 32768 if OPT['il'] else 8192
        E("s_add_u32 s48, s40, 0x%x" % (n * st))
        E("s_add_u32 s49, s40, 0x%x" % (n * st + 4096))
        ks, vs = 20, 24
    if h % 2 == 0:
        for t in range(2):
            for j in range(4):
                r = base + (t * 4 + j) * 4
                E("buffer_load_dwordx4 v[%d:%d], v5, s[%d:%d], s%d offen offset:%d%s" % (r, r + 3, ks, ks + 3, 48 + t, j * 64, NT))
    else:
        for t in range(2):
            for rr in range(4):
                r = base + (t * 4 + rr) * 4
                E("buffer_load_dwordx4 v[%d:%d], v6, s[%d:%d], s%d offen offset:%d%s" % (r, r + 3, vs, vs + 3, 48 + t, rr * 256, NT))

def finish_state(ab):
    E("v_mov_b32 v%d, v%d" % (TMP, LS))
    E("s_nop 1")
    E("v_permlane32_swap_b32 v%d, v%d" % (LS, TMP))
    E("v_add_f32 v%d, v%d, v%d" % (LS, LS, TMP))
    E("v_mov_b32 v%d, v%d" % (TMP, LS))
    E("s_nop 1")
    E("v_permlane16_swap_b32 v%d, v%d" % (LS, TMP))
    E("v_add_f32 v%d, v%d, v%d" % (LS, LS, TMP))
    E("v_mov_b32 v%d, v%d" % (MT, M))
    E("v_mov_b32 v%d, v%d" % (TMP, LS))
    E("s_lshl_b32 s41, s14, 11")
    E("v_lshlrev_b32 v7, 6, v4")
    E("v_lshl_add_u32 v7, v3, 4, v7")
    E("v_add_u32 v7, s41, v7")
    E("s_lshl_b32 s41, s14, 5")
    E("v_lshlrev_b32 v14, 3, v3")
    E("v_add_u32 v14, s41, v14")
    E("v_cmp_gt_u32 vcc, 4, v3")
    E("s_and_saveexec_b64 s[50:51], vcc")
    for i in range(8):
        E("ds_write_b128 v7, v[%d:%d] offset:%d" % (ACC + 4 * i, ACC + 4 * i + 3, LDS_ACC + ab * 8192 + i * 256))
    E("ds_write_b64 v14, v[%d:%d] offset:%d" % (MT, TMP, LDS_ML + ab * 128))
    E("s_mov_b64 exec, s[50:51]")

def main_loop(ntiles, tag, wo_prefetch):
    NH = 2 * ntiles
    extra = 0
    ntw = " nt" if OPT['ntw'] else ""
    for n in range(ntiles):
        C("---- tile %d" % n)
        h = 2 * n
        base = SLOT + 32 * (h % NSLOT)
        issued = min(NH, h + NSLOT)
        E("s_waitcnt vmcnt(%d)" % (8 * (issued - h - 1) + extra))
        for j in range(4):
            for t in range(2):
                r = base + (t * 4 + j) * 4
                S = S0 if t == 0 else S1
                c = "0" if j == 0 else "v[%d:%d]" % (S, S + 3)
                QQ = T if n == 0 else Q
                E("v_mfma_f32_16x16x32_bf16 v[%d:%d], v[%d:%d], v[%d:%d], %s" % (S, S + 3, r, r + 3, QQ + 4 * j, QQ + 4 * j + 3, c))
        if h + NSLOT < NH:
            issue(h + NSLOT)
        else:
            E("s_nop 7")
            E("s_nop 1")
        E("v_max3_f32 v%d, v%d, v%d, v%d" % (MT, S0, S0 + 1, S0 + 2))
        E("v_max3_f32 v%d, v%d, v%d, v%d" % (MT2, S0 + 3, S1, S1 + 1))
        E("v_max3_f32 v%d, v%d, v%d, v%d" % (MT, MT, S1 + 2, S1 + 3))
        E("v_max_f32 v%d, v%d, v%d" % (MT, MT, MT2))
        E("v_mov_b32 v%d, v%d" % (TMP, MT))
        E("s_nop 1")
        E("v_permlane32_swap_b32 v%d, v%d" % (MT, TMP))
        E("v_max_f32 v%d, v%d, v%d" % (MT, MT, TMP))
        E("v_mov_b32 v%d, v%d" % (TMP, MT))
        E("s_nop 1")
        E("v_permlane16_swap_b32 v%d, v%d" % (MT, TMP))
        E("v_max3_f32 v%d, v%d, v%d, v%d" % (MT, MT, TMP, M))
        E("v_cmp_gt_f32 vcc, v%d, v%d" % (MT, M))
        E("s_cbranch_vccz L_nors_%s_%d" % (tag, n))
        E("v_sub_f32 v%d, v%d, v%d" % (AL, M, MT))
        E("v_mul_f32 v%d, s46, v%d" % (AL, AL))
        E("v_exp_f32 v%d, v%d" % (AL, AL))
        E("s_nop 0")
        E("v_mul_f32 v%d, v%d, v%d" % (LS, LS, AL))
        for k in range(32):
            E("v_mul_f32 v%d, v%d, v%d" % (ACC + k, ACC + k, AL))
        L("L_nors_%s_%d" % (tag, n))
        E("v_mov_b32 v%d, v%d" % (M, MT))
        E("v_mul_f32 v%d, s46, v%d" % (NMC, MT))
        for k in range(8):
            E("v_fma_f32 v%d, v%d, s46, -v%d" % (S0 + k, S0 + k, NMC))
        for k in range(8):
            E("v_exp_f32 v%d, v%d" % (S0 + k, S0 + k))
        E("s_nop 0")
        for w in range(4):
            E("v_cvt_pk_bf16_f32 v%d, v%d, v%d" % (P + w, S0 + 2 * w, S0 + 2 * w + 1))
        for k in range(8):
            E("v_add_f32 v%d, v%d, v%d" % (LS, LS, S0 + k))
        h = 2 * n + 1
        base = SLOT + 32 * (h % NSLOT)
        issued = min(NH, h + NSLOT)
        E("s_waitcnt vmcnt(%d)" % (8 * (issued - h - 1) + extra))
        def perms(u):
            tb = T + 8 * (u & 1)
            for w in range(4):
                a = base + (2 * w) * 4 + u
                b = base + (2 * w + 1) * 4 + u
                E("v_perm_b32 v%d, v%d, v%d, s44" % (tb + w, b, a))
            for w in range(4):
                a = base + (2 * w) * 4 + u
                b = base + (2 * w + 1) * 4 + u
                E("v_perm_b32 v%d, v%d, v%d, s45" % (tb + 4 + w, b, a))
        def mf(u):
            tb = T + 8 * (u & 1)
            for x in range(2):
                i = 2 * u + x
                E("v_mfma_f32_16x16x32_bf16 v[%d:%d], v[%d:%d], v[%d:%d], v[%d:%d]" % (ACC + 4 * i, ACC + 4 * i + 3, tb + 4 * x, tb + 4 * x + 3, P, P + 3, ACC + 4 * i, ACC + 4 * i + 3))
        perms(0); perms(1); mf(0); perms(2); mf(1); perms(3)
        if h + NSLOT < NH:
            issue(h + NSLOT)
        elif wo_prefetch and h == 13:
            C("wo slice prefetch")
            for ii in range(8):
                E("buffer_load_dwordx4 v[%d:%d], v8, s[32:35], s%d offen offset:%d%s" % (WREG + 4 * ii, WREG + 4 * ii + 3, 56 + (ii >> 2), (ii & 3) * 1024, ntw))
            extra = 8
        mf(2)
        E("s_nop 1")
        mf(3)
        if n == 0:
            finish_state(1)
            E("s_waitcnt lgkmcnt(0)")
            init_state()
    finish_state(0)

def init_state():
    for k in range(32):
        E("v_mov_b32 v%d, 0" % (ACC + k))
    E("v_mov_b32 v%d, 0x%08x" % (M, NEGBIG))
    E("v_mov_b32 v%d, 0" % LS)

def spin(label, sleep):
    E("s_cbranch_vccz %s_done" % label)
    E("s_add_u32 s60, s60, 1")
    E("s_cmp_lt_u32 s60, 0x40000")
    E("s_cbranch_scc0 %s_done" % label)
    E("s_sleep %d" % sleep)
    E("s_branch %s" % label)
    L(label + "_done")

def gen_main():
    kbegin("concat_heads__gqa_block_cached__sliding_block_cached__decode_kernel")
    CURK[0] = 1
    E("s_cmp_ge_u32 s2, 256")
    E("s_cbranch_scc1 L_end")
    E("s_load_dwordx2 s[4:5], s[0:1], 0")
    E("s_load_dwordx2 s[6:7], s[0:1], 8")
    E("s_load_dwordx2 s[8:9], s[0:1], 16")
    E("s_load_dwordx2 s[10:11], s[0:1], 24")
    E("s_load_dwordx2 s[12:13], s[0:1], 32")
    E("s_load_dwordx2 s[62:63], s[0:1], 40")
    E("s_load_dwordx2 s[64:65], s[0:1], 48")
    E("s_load_dwordx2 s[66:67], s[0:1], 56")
    E("s_load_dwordx2 s[76:77], s[0:1], 64")
    E("s_load_dwordx2 s[70:71], s[0:1], 72")
    E("s_load_dwordx2 s[72:73], s[0:1], 80")
    E("s_load_dwordx2 s[36:37], s[0:1], 88")
    E("s_load_dwordx2 s[28:29], s[0:1], 96")
    E("v_lshrrev_b32 v1, 6, v0")
    E("v_and_b32 v2, 63, v0")
    E("v_readfirstlane_b32 s14, v1")
    roles()
    E("s_lshr_b32 s15, s2, 7")
    E("s_lshl_b32 s18, s16, 4")
    E("s_and_b32 s19, s17, 15")
    E("s_or_b32 s18, s18, s19")
    E("s_lshl_b32 s56, s55, 17")
    E("s_lshl_b32 s57, s54, 8")
    E("s_add_u32 s56, s56, s57")
    E("s_add_u32 s57, s56, 4096")
    E("v_and_b32 v3, 15, v2")
    E("v_lshrrev_b32 v4, 4, v2")
    E("v_lshlrev_b32 v5, 8, v3")
    E("v_lshl_add_u32 v5, v4, 4, v5")
    E("v_lshlrev_b32 v6, 10, v4")
    E("v_lshl_add_u32 v6, v3, 4, v6")
    E("s_mov_b32 s44, 0x05040100")
    E("s_mov_b32 s45, 0x07060302")
    E("s_mov_b32 s46, 0x%08x" % CS_BITS)
    E("s_lshl_b32 s40, s16, 23")
    E("s_lshl_b32 s41, s17, 15")
    E("s_lshl_b32 s42, s14, 13")
    E("s_add_u32 s47, s40, s41")
    E("s_add_u32 s47, s47, s42")
    E("s_add_u32 s47, s47, 0x%x" % (28672 * 256))
    E("s_lshl_b32 s41, s17, 18")
    E("s_lshl_b32 s42, s14, %d" % (13 if OPT['il'] else 16))
    E("s_add_u32 s40, s40, s41")
    E("s_add_u32 s40, s40, s42")
    E("v_lshrrev_b32 v8, 4, v0")
    E("v_lshlrev_b32 v8, 13, v8")
    E("v_lshl_add_u32 v8, v3, 4, v8")
    E("v_and_b32 v10, 3, v0")
    E("v_lshrrev_b32 v11, 2, v0")
    E("v_lshlrev_b32 v12, 13, v11")
    E("v_lshl_add_u32 v12, v10, 4, v12")
    E("v_lshlrev_b32 v13, 1, v11")
    E("v_lshlrev_b32 v7, 4, v2")
    E("s_lshl_b32 s41, s18, 6")
    for i in range(8):
        E("s_add_u32 s%d, s41, 0x%x" % (84 + i, i * 0x80000))
    for k in range(4):
        E("v_mov_b32 v%d, -1" % (88 + k))
    E("s_waitcnt lgkmcnt(0)")
    srd(28, WS_SIZE)
    srd(36, 256)
    srd(72, 2048)
    E("s_cmp_eq_u32 s52, 0")
    E("s_cselect_b64 s[32:33], s[12:13], s[70:71]")
    srd(32, 0x400000)
    E("s_cmp_eq_u32 s15, 0")
    E("s_cselect_b64 s[80:81], s[10:11], s[76:77]")
    E("s_cselect_b64 s[76:77], s[4:5], s[62:63]")
    srd(76, 1024)
    srd(80, 0x400000)
    E("s_mov_b64 s[20:21], s[6:7]")
    E("s_mov_b64 s[24:25], s[8:9]")
    E("s_mov_b64 s[68:69], s[66:67]")
    srd(20, 0x4000000)
    srd(24, 0x4000000)
    srd(64, 0x4000000)
    srd(68, 0x4000000)
    if OPT['stamp'] == 1: E("v_mov_b32 v92, 0")
    stamp(0)
    ntw = " nt" if OPT['ntw'] else ""
    def wq_loads():
        for i in range(8):
            E("buffer_load_dwordx4 v[%d:%d], v12, s[80:83], s%d offen%s" % (32 + 4 * i, 35 + 4 * i, 84 + i, ntw))
        for i in range(8):
            E("buffer_load_ushort v%d, v13, s[76:79], 0 offen offset:%d" % (64 + i, i * 128))
    E("s_cmp_eq_u32 s14, 0")
    E("s_cbranch_scc1 L_c0")
    wq_loads()
    for h in range(OPT['pace']):
        issue(h)
    E("s_waitcnt vmcnt(%d)" % (8 * OPT['pace']))
    E("s_branch L_cd")
    L("L_c0")
    E("s_setprio 3")
    C("sentinel clears (write-through): O_A, O_B, OP, ML_A, ML_B, q slot")
    E("s_lshl_b32 s41, s2, 11")
    E("s_add_u32 s41, s41, 0x%x" % WS_O)
    E("s_add_u32 s42, s41, 0x%x" % (256 * 2048))
    E("buffer_store_dwordx4 v[88:91], v7, s[28:31], s41 offen sc1")
    E("buffer_store_dwordx4 v[88:91], v7, s[28:31], s41 offen offset:1024 sc1")
    E("buffer_store_dwordx4 v[88:91], v7, s[28:31], s42 offen sc1")
    E("buffer_store_dwordx4 v[88:91], v7, s[28:31], s42 offen offset:1024 sc1")
    E("s_lshl_b32 s41, s52, 2")
    E("s_add_u32 s41, s41, s54")
    E("s_lshl_b32 s41, s41, 5")
    E("s_add_u32 s41, s41, s55")
    E("s_lshl_b32 s41, s41, 9")
    E("s_add_u32 s41, s41, 0x%x" % WS_OP)
    E("v_cmp_gt_u32 vcc, 32, v2")
    E("s_and_saveexec_b64 s[50:51], vcc")
    E("buffer_store_dwordx4 v[88:91], v7, s[28:31], s41 offen sc1")
    E("v_cmp_gt_u32 vcc, 4, v2")
    E("s_and_b64 exec, exec, vcc")
    E("s_lshl_b32 s41, s15, 14")
    E("s_lshl_b32 s42, s18, 7")
    E("s_add_u32 s58, s41, s42")
    E("buffer_store_dwordx4 v[88:91], v7, s[28:31], s58 offen offset:%d sc1" % WS_Q)
    E("v_cmp_gt_u32 vcc, 2, v2")
    E("s_and_b64 exec, exec, vcc")
    E("s_lshl_b32 s41, s2, 7")
    E("s_add_u32 s41, s41, 0x%x" % WS_ML)
    E("s_add_u32 s42, s41, 0x%x" % (256 * 128))
    E("buffer_store_dwordx4 v[88:91], v7, s[28:31], s41 offen sc1")
    E("buffer_store_dwordx4 v[88:91], v7, s[28:31], s42 offen sc1")
    E("s_mov_b64 exec, s[50:51]")
    wq_loads()
    E("s_waitcnt vmcnt(16)")
    stamp(2)
    NC = OPT['nc']
    if NC == 1:
        E("s_mov_b32 s41, 0")
        E("s_movk_i32 s59, 255")
    elif NC == 2:
        E("s_and_b32 s41, s2, 1")
        E("s_lshl_b32 s41, s41, 6")
        E("s_movk_i32 s59, 127")
    elif NC == 4:
        E("s_and_b32 s41, s2, 3")
        E("s_lshl_b32 s41, s41, 6")
        E("s_movk_i32 s59, 63")
    E("v_cmp_eq_u32 vcc, 0, v2")
    E("s_and_saveexec_b64 s[50:51], vcc")
    E("v_mov_b32 v14, s41")
    E("v_mov_b32 v9, 1")
    E("buffer_atomic_add v9, v14, s[36:39], 0 offen sc0 sc1")
    E("s_mov_b64 exec, s[50:51]")
    E("s_waitcnt vmcnt(1)")
    L("L_cd")
    for k in range(8):
        E("v_mov_b32 v%d, 0" % (72 + k))
    for i in range(8):
        E("v_lshlrev_b32 v%d, 16, v%d" % (64 + i, 64 + i))
    for i in range(8):
        for u in range(4):
            src = 32 + 4 * i + u
            E("v_lshlrev_b32 v80, 16, v%d" % src)
            E("v_and_b32 v81, 0xffff0000, v%d" % src)
            E("v_fmac_f32 v%d, v%d, v80" % (72 + 2 * u, 64 + i))
            E("v_fmac_f32 v%d, v%d, v81" % (73 + 2 * u, 64 + i))
    E("s_nop 1")
    for k in range(8):
        E("v_add_f32_dpp v%d, v%d, v%d row_ror:4 row_mask:0xf bank_mask:0xf" % (80 + k, 72 + k, 72 + k))
    E("s_nop 1")
    for k in range(8):
        E("v_add_f32_dpp v%d, v%d, v%d row_ror:8 row_mask:0xf bank_mask:0xf" % (72 + k, 80 + k, 80 + k))
    E("v_lshrrev_b32 v14, 4, v0")
    E("v_lshlrev_b32 v14, 7, v14")
    E("v_lshl_add_u32 v14, v10, 5, v14")
    E("v_cmp_gt_u32 vcc, 4, v3")
    E("s_and_saveexec_b64 s[50:51], vcc")
    E("ds_write_b128 v14, v[72:75] offset:%d" % LDS_QP)
    E("ds_write_b128 v14, v[76:79] offset:%d" % (LDS_QP + 16))
    E("s_mov_b64 exec, s[50:51]")
    E("s_waitcnt lgkmcnt(0)")
    stamp(1)
    E("s_barrier")
    E("s_cmp_eq_u32 s14, 0")
    E("s_cbranch_scc1 L_helper")
    for h in range(OPT['pace'], NSLOT):
        E("s_waitcnt vmcnt(%d)" % (8 * (OPT['pace'] - 1)))
        issue(h)
    E("s_barrier")
    E("s_branch L_go")
    L("L_helper")
    E("v_cmp_gt_u32 vcc, 32, v2")
    E("s_and_saveexec_b64 s[50:51], vcc")
    E("v_lshlrev_b32 v14, 2, v2")
    for r in range(16):
        E("ds_read_b32 v%d, v14 offset:%d" % (32 + r, LDS_QP + r * 128))
    E("s_waitcnt lgkmcnt(0)")
    for r in range(1, 16):
        E("v_add_f32 v32, v32, v%d" % (32 + r))
    E("s_nop 1")
    E("v_mov_b32_dpp v33, v32 quad_perm:[1,0,3,2] row_mask:0xf bank_mask:0xf")
    E("s_nop 0")
    E("v_cvt_pk_bf16_f32 v32, v32, v33")
    E("v_and_b32 v14, 1, v2")
    E("v_cmp_eq_u32 vcc, 0, v14")
    E("s_and_b64 exec, exec, vcc")
    E("v_lshlrev_b32 v14, 1, v2")
    E("buffer_store_dword v32, v14, s[28:31], s58 offen offset:%d sc1" % WS_Q)
    E("s_mov_b64 exec, s[50:51]")
    E("s_waitcnt vmcnt(1)")
    stamp(7)
    if OPT['direct'] == 0:
        E("v_readfirstlane_b32 s43, v9")
        E("s_cmp_lg_u32 s43, s59")
        E("s_cbranch_scc1 L_notlast")
        E("v_cmp_eq_u32 vcc, 0, v2")
        E("s_and_saveexec_b64 s[50:51], vcc")
        E("v_mov_b32 v14, 192")
        E("v_mov_b32 v15, 1")
        E("buffer_atomic_add v15, v14, s[36:39], 0 offen sc1")
        E("s_mov_b64 exec, s[50:51]")
        L("L_notlast")
        E("s_mov_b32 s60, 0")
        E("v_mov_b32 v14, 192")
        L("L_pq")
        E("buffer_load_dword v15, v14, s[36:39], 0 offen sc1")
        E("s_waitcnt vmcnt(0)")
        E("v_cmp_gt_u32 vcc, %d, v15" % OPT['nc'])
        spin("L_pq", OPT['slq'])
    else:
        E("s_mov_b32 s60, 0")
        E("v_and_b32 v14, %d, v2" % (OPT['nc'] - 1))
        E("v_lshlrev_b32 v14, 6, v14")
        L("L_pq")
        E("buffer_load_dword v15, v14, s[36:39], 0 offen sc1")
        E("s_waitcnt vmcnt(0)")
        E("v_cmp_gt_u32 vcc, %d, v15" % (256 // OPT['nc']))
        spin("L_pq", OPT['slq'])
    stamp(8)
    E("v_lshrrev_b32 v14, 2, v2")
    E("v_lshlrev_b32 v14, 7, v14")
    E("v_and_b32 v15, 3, v2")
    E("v_lshl_add_u32 v14, v15, 4, v14")
    E("s_lshl_b32 s41, s16, 11")
    E("s_add_u32 s42, s41, 16384")
    L("L_pqd")
    E("buffer_load_dwordx4 v[64:67], v14, s[28:31], s41 offen offset:%d sc1" % WS_Q)
    E("buffer_load_dwordx4 v[68:71], v14, s[28:31], s42 offen offset:%d sc1" % WS_Q)
    E("s_waitcnt vmcnt(0)")
    E("v_max3_u32 v15, v64, v65, v66")
    E("v_max3_u32 v15, v15, v67, v68")
    E("v_max3_u32 v15, v15, v69, v70")
    E("v_max_u32 v15, v15, v71")
    E("v_cmp_eq_u32 vcc, -1, v15")
    spin("L_pqd", 1)
    E("ds_write_b128 v7, v[64:67] offset:%d" % LDS_Q)
    E("ds_write_b128 v7, v[68:71] offset:%d" % (LDS_Q + 1024))
    E("s_waitcnt lgkmcnt(0)")
    E("s_setprio 0")
    E("s_barrier")
    for h in range(NSLOT):
        issue(h)
    L("L_go")
    stamp(9)
    for k in range(16):
        E("v_mov_b32 v%d, 0" % (Q + k))
        E("v_mov_b32 v%d, 0" % (T + k))
    E("v_cmp_gt_u32 vcc, 4, v3")
    E("s_and_saveexec_b64 s[50:51], vcc")
    for j in range(4):
        E("ds_read_b128 v[%d:%d], v5 offset:%d" % (Q + 4 * j, Q + 4 * j + 3, LDS_Q + j * 64))
        E("ds_read_b128 v[%d:%d], v5 offset:%d" % (T + 4 * j, T + 4 * j + 3, LDS_Q + 1024 + j * 64))
    E("s_mov_b64 exec, s[50:51]")
    init_state()
    E("s_waitcnt lgkmcnt(0)")
    main_loop(9, "a", True)
    stamp(3)
    E("s_waitcnt lgkmcnt(0)")
    E("s_barrier")
    E("s_lshr_b32 s15, s14, 1")
    E("v_bfe_u32 v16, v0, 4, 3")
    E("v_bfe_u32 v17, v0, 2, 2")
    E("v_and_b32 v18, 3, v0")
    E("v_lshlrev_b32 v19, 8, v16")
    E("v_lshl_add_u32 v19, v17, 6, v19")
    E("v_lshl_add_u32 v19, v18, 4, v19")
    E("s_lshl_b32 s41, s15, 13")
    E("v_add_u32 v19, s41, v19")
    E("v_lshlrev_b32 v20, 3, v18")
    E("s_lshl_b32 s41, s15, 7")
    E("v_add_u32 v22, s41, v20")
    for w in range(4):
        E("ds_read_b128 v[%d:%d], v19 offset:%d" % (32 + 4 * w, 35 + 4 * w, LDS_ACC + w * 2048))
    for w in range(4):
        E("ds_read_b64 v[%d:%d], v22 offset:%d" % (48 + 2 * w, 49 + 2 * w, LDS_ML + w * 32))
    E("s_waitcnt lgkmcnt(0)")
    E("v_max3_f32 v56, v48, v50, v52")
    E("v_max_f32 v56, v56, v54")
    for w in range(4):
        E("v_sub_f32 v%d, v%d, v56" % (58 + w, 48 + 2 * w))
        E("v_mul_f32 v%d, s46, v%d" % (58 + w, 58 + w))
        E("v_exp_f32 v%d, v%d" % (58 + w, 58 + w))
    E("s_nop 0")
    E("v_mul_f32 v57, v58, v49")
    for w in range(1, 4):
        E("v_fmac_f32 v57, v%d, v%d" % (58 + w, 49 + 2 * w))
    for r in range(4):
        E("v_mul_f32 v%d, v58, v%d" % (64 + r, 32 + r))
        for w in range(1, 4):
            E("v_fmac_f32 v%d, v%d, v%d" % (64 + r, 58 + w, 32 + 4 * w + r))
    E("s_lshl_b32 s42, s15, 8")
    E("s_add_u32 s42, s42, s2")
    E("s_lshl_b32 s41, s42, 11")
    E("s_add_u32 s41, s41, 0x%x" % WS_O)
    E("v_lshlrev_b32 v21, 9, v18")
    E("v_lshl_add_u32 v21, v16, 6, v21")
    E("v_lshl_add_u32 v21, v17, 4, v21")
    E("buffer_store_dwordx4 v[64:67], v21, s[28:31], s41 offen sc1")
    E("v_and_b32 v23, 127, v0")
    E("v_cmp_gt_u32 vcc, 4, v23")
    E("s_and_saveexec_b64 s[50:51], vcc")
    E("s_lshl_b32 s41, s42, 7")
    E("s_add_u32 s41, s41, 0x%x" % WS_ML)
    E("buffer_store_dwordx2 v[56:57], v20, s[28:31], s41 offen sc1")
    E("s_mov_b64 exec, s[50:51]")
    stamp(4)
    E("s_lshl_b32 s40, s52, 8")
    E("s_add_u32 s40, s40, s16")
    E("v_and_b32 v16, 31, v0")
    E("v_lshlrev_b32 v17, 10, v16")
    E("s_lshl_b32 s41, s40, 7")
    E("s_lshl_b32 s42, s53, 3")
    E("s_add_u32 s41, s41, s42")
    E("s_add_u32 s41, s41, 0x%x" % WS_ML)
    E("v_lshrrev_b32 v18, 5, v0")
    E("v_lshlrev_b32 v19, 16, v18")
    E("v_lshl_add_u32 v19, v16, 4, v19")
    E("s_lshl_b32 s84, s40, 11")
    E("s_lshl_b32 s42, s53, 9")
    E("s_add_u32 s84, s84, s42")
    E("s_add_u32 s84, s84, 0x%x" % WS_O)
    for u in range(1, 4):
        E("s_add_u32 s%d, s84, 0x%x" % (84 + u, u * 16384))
    E("s_mov_b32 s60, 0")
    L("L_pml")
    E("buffer_load_dwordx2 v[20:21], v17, s[28:31], s41 offen sc1")
    E("s_waitcnt vmcnt(0)")
    E("v_max_u32 v22, v20, v21")
    E("v_cmp_eq_u32 vcc, -1, v22")
    spin("L_pml", OPT['sl1'])
    L("L_po")
    for u in range(4):
        E("buffer_load_dwordx4 v[%d:%d], v19, s[28:31], s%d offen sc1" % (32 + 4 * u, 35 + 4 * u, 84 + u))
    E("s_waitcnt vmcnt(0)")
    E("v_max3_u32 v22, v32, v33, v34")
    for k in range(35, 47, 2):
        E("v_max3_u32 v22, v22, v%d, v%d" % (k, k + 1))
    E("v_max_u32 v22, v22, v47")
    E("v_cmp_eq_u32 vcc, -1, v22")
    spin("L_po", OPT['sl2'])
    stamp(5)
    E("v_mov_b32 v22, v20")
    for sh in (1, 2, 4, 8):
        E("s_nop 1")
        E("v_max_f32_dpp v22, v22, v22 row_ror:%d row_mask:0xf bank_mask:0xf" % sh)
    E("v_mov_b32 v23, v22")
    E("s_nop 1")
    E("v_permlane16_swap_b32 v22, v23")
    E("v_max_f32 v22, v22, v23")
    E("v_sub_f32 v20, v20, v22")
    E("v_mul_f32 v20, s46, v20")
    E("v_exp_f32 v20, v20")
    E("s_nop 0")
    E("v_mul_f32 v21, v20, v21")
    for sh in (1, 2, 4, 8):
        E("s_nop 1")
        E("v_add_f32_dpp v21, v21, v21 row_ror:%d row_mask:0xf bank_mask:0xf" % sh)
    E("v_mov_b32 v23, v21")
    E("s_nop 1")
    E("v_permlane16_swap_b32 v21, v23")
    E("v_add_f32 v21, v21, v23")
    E("v_rcp_f32 v21, v21")
    E("v_lshlrev_b32 v24, 4, v18")
    for u in range(4):
        E("v_add_u32 v23, %d, v24" % (4 * u))
        E("ds_bpermute_b32 v%d, v23, v20" % (64 + u))
    E("s_waitcnt lgkmcnt(0)")
    for r in range(4):
        E("v_mul_f32 v%d, v64, v%d" % (68 + r, 32 + r))
        for u in range(1, 4):
            E("v_fmac_f32 v%d, v%d, v%d" % (68 + r, 64 + u, 32 + 4 * u + r))
    for r in range(4):
        E("v_mov_b32 v%d, v%d" % (72 + r, 68 + r))
    E("s_nop 1")
    for r in range(4):
        E("v_permlane32_swap_b32 v%d, v%d" % (68 + r, 72 + r))
    for r in range(4):
        E("v_add_f32 v%d, v%d, v%d" % (68 + r, 68 + r, 72 + r))
    E("v_lshlrev_b32 v23, 9, v1")
    E("v_lshl_add_u32 v23, v16, 4, v23")
    E("ds_write_b128 v23, v[68:71] offset:%d" % LDS_T1)
    E("s_waitcnt lgkmcnt(0)")
    E("s_barrier")
    E("v_lshrrev_b32 v25, 4, v0")
    E("v_cmp_gt_u32 vcc, 128, v0")
    E("s_and_saveexec_b64 s[50:51], vcc")
    E("v_lshlrev_b32 v23, 2, v0")
    for w in range(4):
        E("ds_read_b32 v%d, v23 offset:%d" % (68 + w, LDS_T1 + w * 512))
    E("s_waitcnt lgkmcnt(0)")
    E("v_add_f32 v68, v68, v69")
    E("v_add_f32 v70, v70, v71")
    E("v_add_f32 v68, v68, v70")
    E("v_mul_f32 v68, v68, v21")
    E("v_cvt_pk_bf16_f32 v68, v68, v68")
    E("v_lshlrev_b32 v68, 16, v68")
    E("v_lshlrev_b32 v69, 3, v3")
    E("v_add_u32 v69, v69, v25")
    E("v_lshlrev_b32 v69, 2, v69")
    E("ds_write_b32 v69, v68 offset:%d" % LDS_TO)
    E("s_mov_b64 exec, s[50:51]")
    E("s_waitcnt lgkmcnt(0)")
    E("s_barrier")
    E("v_lshlrev_b32 v23, 5, v25")
    E("ds_read_b128 v[64:67], v23 offset:%d" % LDS_TO)
    E("ds_read_b128 v[68:71], v23 offset:%d" % (LDS_TO + 16))
    for k in range(8):
        E("v_mov_b32 v%d, 0" % (72 + k))
    E("s_waitcnt lgkmcnt(0)")
    for ii in range(8):
        for u in range(4):
            src = WREG + 4 * ii + u
            E("v_lshlrev_b32 v80, 16, v%d" % src)
            E("v_and_b32 v81, 0xffff0000, v%d" % src)
            E("v_fmac_f32 v%d, v%d, v80" % (72 + 2 * u, 64 + ii))
            E("v_fmac_f32 v%d, v%d, v81" % (73 + 2 * u, 64 + ii))
    for k in range(8):
        E("v_mov_b32 v%d, v%d" % (80 + k, 72 + k))
    E("s_nop 1")
    for k in range(8):
        E("v_permlane16_swap_b32 v%d, v%d" % (72 + k, 80 + k))
    for k in range(8):
        E("v_add_f32 v%d, v%d, v%d" % (72 + k, 72 + k, 80 + k))
    for k in range(8):
        E("v_mov_b32 v%d, v%d" % (80 + k, 72 + k))
    E("s_nop 1")
    for k in range(8):
        E("v_permlane32_swap_b32 v%d, v%d" % (72 + k, 80 + k))
    for k in range(8):
        E("v_add_f32 v%d, v%d, v%d" % (72 + k, 72 + k, 80 + k))
    E("v_lshlrev_b32 v23, 9, v1")
    E("v_lshl_add_u32 v23, v3, 5, v23")
    E("ds_write_b128 v23, v[72:75] offset:%d" % LDS_T3)
    E("ds_write_b128 v23, v[76:79] offset:%d" % (LDS_T3 + 16))
    E("s_waitcnt lgkmcnt(0)")
    E("s_barrier")
    E("s_lshl_b32 s40, s52, 2")
    E("s_add_u32 s40, s40, s54")
    E("s_lshl_b32 s41, s40, 14")
    E("s_add_u32 s41, s41, 0x%x" % WS_OP)
    E("s_lshl_b32 s42, s55, 9")
    E("s_add_u32 s42, s42, s41")
    E("v_cmp_gt_u32 vcc, 128, v0")
    E("s_and_saveexec_b64 s[50:51], vcc")
    E("v_lshlrev_b32 v23, 2, v0")
    for w in range(4):
        E("ds_read_b32 v%d, v23 offset:%d" % (68 + w, LDS_T3 + w * 512))
    E("s_waitcnt lgkmcnt(0)")
    E("v_add_f32 v68, v68, v69")
    E("v_add_f32 v70, v70, v71")
    E("v_add_f32 v68, v68, v70")
    E("buffer_store_dword v68, v23, s[28:31], s42 offen sc1")
    E("s_mov_b64 exec, s[50:51]")
    stamp(6)
    stamp_flush()
    E("s_lshl_b32 s43, s40, 2")
    E("s_cmp_lg_u32 s43, s55")
    E("s_cbranch_scc1 L_end")
    E("v_and_b32 v23, 127, v0")
    E("v_lshrrev_b32 v24, 7, v0")
    E("v_lshlrev_b32 v25, 13, v24")
    E("v_lshl_add_u32 v25, v23, 2, v25")
    E("s_add_u32 s42, s41, 4096")
    E("s_mov_b32 s60, 0")
    L("L_pf")
    for i in range(16):
        E("buffer_load_dword v%d, v25, s[28:31], s%d offen offset:%d sc1" % (32 + i, 41 if i < 8 else 42, (i & 7) * 512))
    E("s_waitcnt vmcnt(0)")
    E("v_max3_u32 v22, v32, v33, v34")
    for k in range(35, 47, 2):
        E("v_max3_u32 v22, v22, v%d, v%d" % (k, k + 1))
    E("v_max_u32 v22, v22, v47")
    E("v_cmp_eq_u32 vcc, -1, v22")
    spin("L_pf", OPT['sl3'])
    for i in range(1, 16):
        E("v_add_f32 v32, v32, v%d" % (32 + i))
    E("v_lshlrev_b32 v25, 2, v0")
    E("ds_write_b32 v25, v32 offset:%d" % LDS_T4)
    E("s_waitcnt lgkmcnt(0)")
    E("s_barrier")
    E("v_cmp_gt_u32 vcc, 128, v0")
    E("s_and_saveexec_b64 s[50:51], vcc")
    E("s_cbranch_execz L_end")
    E("ds_read_b32 v33, v25 offset:%d" % (LDS_T4 + 512))
    E("s_waitcnt lgkmcnt(0)")
    E("v_add_f32 v32, v32, v33")
    E("v_cvt_pk_bf16_f32 v32, v32, v32")
    E("s_lshl_b32 s43, s40, 8")
    E("v_lshlrev_b32 v25, 1, v0")
    E("buffer_store_short v32, v25, s[72:75], s43 offen")
    E("s_endpgm")
    L("L_end")
    E("s_endpgm")

def main():
    for o in sys.argv[2:]:
        k, v = o.split('=')
        assert k in OPT, k
        OPT[k] = int(v)
    out.append(HEADER.rstrip())
    out.append("; @launch grid=(256,1,1) block=(256,1,1) lds=%d" % LDS_TOTAL)
    out.append('.amdgcn_target "amdgcn-amd-amdhsa--gfx950"')
    out.append(".text")
    gen_main()
    out.append('.section .rodata,"a"')
    out.append(kd("concat_heads__gqa_block_cached__sliding_block_cached__decode_kernel", 256))
    open(sys.argv[1], 'w').write("\n".join(out) + "\n")
main()
```

```python
import struct, sys

NAME = "concat_heads__gqa_block_cached__sliding_block_cached__decode"
WS_Q = 0x0
WS_ML = 0x10000
WS_O = 0x20000
WS_OP = 0x200000
WS_SIZE = 0x400000
CS = (128.0 ** -0.5) * 1.4426950408889634
def f32bits(x): return struct.unpack('<I', struct.pack('<f', x))[0]
CS_BITS = f32bits(CS)
NEGBIG = f32bits(-1.0e30)

out = []
def E(s): out.append("    " + s)
def L(s): out.append(s + ":")
def C(s): out.append("    ; " + s)
HEADER = open('cdna_kernels/%s.s.ref' % NAME).read().split('; Override launch')[0]

def srd(s, size):
    E("s_mov_b32 s%d, 0x%x" % (s + 2, size))
    E("s_mov_b32 s%d, 0x00020000" % (s + 3))

OPT = dict(w0pf=2, direct=0, pace=1, nc=2, slq=4, il=1, prio=0, nt=1, ntw=0, stamp=0, pf=2, sl1=2, sl2=1, sl3=1)
LDS_ACC = 0
LDS_ML = 16384
LDS_T1 = 20480
LDS_TO = 22528
LDS_T3 = 24576
LDS_T4 = 26624
LDS_QP = 28672
LDS_Q = 30720
LDS_TOTAL = 32768

Q = 16; ACC = 32; S0 = 64; S1 = 68; P = 72; T = 76; SLOT = 96
M = 9; LS = 10; NMC = 11; MT = 12; TMP = 13; MT2 = 14; AL = 15
NSLOT = 5
WREG = SLOT + 32 * 3

def kbegin(name):
    out.append(".globl %s" % name)
    out.append(".p2align 8")
    out.append(".type %s,@function" % name)
    out.append("%s:" % name)

def kd(name, vgpr, sgpr=102):
    return """.p2align 6
.amdhsa_kernel %s
  .amdhsa_next_free_vgpr %d
  .amdhsa_next_free_sgpr %d
  .amdhsa_accum_offset %d
  .amdhsa_group_segment_fixed_size 0
  .amdhsa_kernarg_size 104
  .amdhsa_user_sgpr_count 2
  .amdhsa_user_sgpr_kernarg_segment_ptr 1
  .amdhsa_system_sgpr_workgroup_id_x 1
.end_amdhsa_kernel
""" % (name, vgpr, sgpr, (vgpr + 3) // 4 * 4)

CURK = [1]
def stamp(idx):
    if OPT['stamp'] != CURK[0]: return
    E("s_memrealtime s[92:93]")
    E("s_waitcnt lgkmcnt(0)")
    E("v_writelane_b32 v92, s92, %d" % idx)
def stamp_flush():
    if OPT['stamp'] != CURK[0]: return
    E("s_mov_b64 exec, -1")
    E("s_mul_i32 s92, s2, 5")
    E("s_add_u32 s92, s92, s14")
    E("s_lshl_b32 s92, s92, 8")
    E("s_add_u32 s92, s92, 0x300000")
    E("v_lshlrev_b32 v93, 2, v2")
    E("buffer_store_dword v92, v93, s[28:31], s92 offen")

def roles():
    E("s_and_b32 s16, s2, 7")
    E("s_lshr_b32 s17, s2, 3")
    E("s_lshr_b32 s52, s17, 4")
    E("s_lshr_b32 s53, s17, 2")
    E("s_and_b32 s53, s53, 3")
    E("s_and_b32 s54, s17, 3")
    E("s_lshl_b32 s55, s16, 2")
    E("s_add_u32 s55, s55, s53")

def gen_pre():
    kbegin("pre_kernel")
    CURK[0] = 2
    E("s_cmp_ge_u32 s2, 256")
    E("s_cbranch_scc1 L_p_end")
    if OPT['stamp'] == 2: E("v_mov_b32 v92, 0")
    stamp(0)
    E("s_load_dwordx2 s[4:5], s[0:1], 0")
    E("s_load_dwordx2 s[20:21], s[0:1], 8")
    E("s_load_dwordx2 s[24:25], s[0:1], 16")
    E("s_load_dwordx2 s[10:11], s[0:1], 24")
    E("s_load_dwordx2 s[62:63], s[0:1], 40")
    E("s_load_dwordx2 s[68:69], s[0:1], 64")
    E("s_load_dwordx2 s[28:29], s[0:1], 96")
    E("v_lshrrev_b32 v1, 6, v0")
    E("v_and_b32 v2, 63, v0")
    E("v_readfirstlane_b32 s14, v1")
    roles()
    E("s_lshr_b32 s15, s2, 7")
    E("s_lshl_b32 s18, s16, 4")
    E("s_and_b32 s19, s17, 15")
    E("s_or_b32 s18, s18, s19")
    E("v_and_b32 v10, 3, v0")
    E("v_lshrrev_b32 v11, 2, v0")
    E("v_lshlrev_b32 v12, 13, v11")
    E("v_lshl_add_u32 v12, v10, 4, v12")
    E("v_lshlrev_b32 v13, 1, v11")
    E("v_lshlrev_b32 v7, 4, v2")
    E("s_lshl_b32 s41, s18, 6")
    for i in range(8):
        E("s_add_u32 s%d, s41, 0x%x" % (84 + i, i * 0x80000))
    E("s_waitcnt lgkmcnt(0)")
    E("s_cmp_eq_u32 s15, 0")
    E("s_cselect_b64 s[76:77], s[4:5], s[62:63]")
    E("s_cselect_b64 s[80:81], s[10:11], s[68:69]")
    srd(76, 1024)
    srd(80, 0x400000)
    srd(28, WS_SIZE)
    srd(20, 0x4000000)
    srd(24, 0x4000000)
    ntw = " nt" if OPT['ntw'] else ""
    stamp(1)
    for i in range(8):
        E("buffer_load_dwordx4 v[%d:%d], v12, s[80:83], s%d offen%s" % (32 + 4 * i, 35 + 4 * i, 84 + i, ntw))
    for i in range(8):
        E("buffer_load_ushort v%d, v13, s[76:79], 0 offen offset:%d" % (64 + i, i * 128))
    E("s_lshl_b32 s40, s16, 23")
    E("s_lshl_b32 s41, s17, 18")
    E("s_add_u32 s40, s40, s41")
    E("s_lshl_b32 s41, s14, 16")
    E("s_add_u32 s40, s40, s41")
    pf = OPT['pf']
    for h in range(pf):
        n = h // 2
        E("s_add_u32 s48, s40, 0x%x" % (n * 8192))
        E("s_add_u32 s49, s40, 0x%x" % (n * 8192 + 4096))
        for t in range(2):
            for j in range(4):
                r = 96 + (t * 4 + j) * 4
                E("buffer_load_dwordx4 v[%d:%d], v7, s[%d:%d], s%d offen offset:%d" % (r, r + 3, 20 + 4 * (h & 1), 23 + 4 * (h & 1), 48 + t, j * 1024))
    for k in range(4):
        E("v_mov_b32 v%d, -1" % (88 + k))
    E("s_lshl_b32 s41, s2, 11")
    E("s_add_u32 s41, s41, 0x%x" % WS_O)
    E("s_cmp_eq_u32 s14, 1")
    E("s_cselect_b32 s42, 0x%x, 0" % (256 * 2048))
    E("s_add_u32 s41, s41, s42")
    E("s_cmp_gt_u32 s14, 1")
    E("s_cbranch_scc1 L_p_c2")
    E("buffer_store_dwordx4 v[88:91], v7, s[28:31], s41 offen")
    E("buffer_store_dwordx4 v[88:91], v7, s[28:31], s41 offen offset:1024")
    E("s_branch L_p_c3")
    L("L_p_c2")
    E("s_cmp_lg_u32 s14, 2")
    E("s_cbranch_scc1 L_p_c3")
    E("s_lshl_b32 s41, s52, 2")
    E("s_add_u32 s41, s41, s54")
    E("s_lshl_b32 s41, s41, 5")
    E("s_add_u32 s41, s41, s55")
    E("s_lshl_b32 s41, s41, 9")
    E("s_add_u32 s41, s41, 0x%x" % WS_OP)
    E("v_cmp_gt_u32 vcc, 32, v2")
    E("s_and_saveexec_b64 s[50:51], vcc")
    E("buffer_store_dwordx4 v[88:91], v7, s[28:31], s41 offen")
    E("v_cmp_gt_u32 vcc, 2, v2")
    E("s_and_b64 exec, exec, vcc")
    E("s_lshl_b32 s41, s2, 7")
    E("s_add_u32 s41, s41, 0x%x" % WS_ML)
    E("s_add_u32 s42, s41, 0x%x" % (256 * 128))
    E("buffer_store_dwordx4 v[88:91], v7, s[28:31], s41 offen")
    E("buffer_store_dwordx4 v[88:91], v7, s[28:31], s42 offen")
    E("s_mov_b64 exec, s[50:51]")
    L("L_p_c3")
    for k in range(8):
        E("v_mov_b32 v%d, 0" % (72 + k))
    E("s_waitcnt vmcnt(%d)" % (8 * pf))
    stamp(2)
    for i in range(8):
        E("v_lshlrev_b32 v%d, 16, v%d" % (64 + i, 64 + i))
    for i in range(8):
        for u in range(4):
            src = 32 + 4 * i + u
            E("v_lshlrev_b32 v80, 16, v%d" % src)
            E("v_and_b32 v81, 0xffff0000, v%d" % src)
            E("v_fmac_f32 v%d, v%d, v80" % (72 + 2 * u, 64 + i))
            E("v_fmac_f32 v%d, v%d, v81" % (73 + 2 * u, 64 + i))
    E("s_nop 1")
    for k in range(8):
        E("v_add_f32_dpp v%d, v%d, v%d row_ror:4 row_mask:0xf bank_mask:0xf" % (80 + k, 72 + k, 72 + k))
    E("s_nop 1")
    for k in range(8):
        E("v_add_f32_dpp v%d, v%d, v%d row_ror:8 row_mask:0xf bank_mask:0xf" % (72 + k, 80 + k, 80 + k))
    E("v_lshrrev_b32 v14, 4, v0")
    E("v_lshlrev_b32 v14, 7, v14")
    E("v_lshl_add_u32 v14, v10, 5, v14")
    E("v_and_b32 v3, 15, v0")
    E("v_cmp_gt_u32 vcc, 4, v3")
    E("s_and_saveexec_b64 s[50:51], vcc")
    E("ds_write_b128 v14, v[72:75]")
    E("ds_write_b128 v14, v[76:79] offset:16")
    E("s_mov_b64 exec, s[50:51]")
    E("s_waitcnt lgkmcnt(0)")
    E("s_barrier")
    stamp(3)
    if OPT['stamp'] == 2:
        E("s_waitcnt vmcnt(0)")
        stamp(4)
        stamp_flush()
    E("v_cmp_gt_u32 vcc, 32, v0")
    E("s_and_saveexec_b64 s[50:51], vcc")
    E("s_cbranch_execz L_p_end")
    E("v_lshlrev_b32 v5, 2, v0")
    for r in range(16):
        E("ds_read_b32 v%d, v5 offset:%d" % (32 + r, r * 128))
    E("s_waitcnt lgkmcnt(0)")
    for r in range(1, 16):
        E("v_add_f32 v32, v32, v%d" % (32 + r))
    E("v_cvt_pk_bf16_f32 v32, v32, v32")
    E("s_lshl_b32 s41, s15, 13")
    E("s_lshl_b32 s42, s18, 6")
    E("s_add_u32 s41, s41, s42")
    E("v_lshlrev_b32 v5, 1, v0")
    E("buffer_store_short v32, v5, s[28:31], s41 offen offset:%d" % WS_Q)
    L("L_p_end")
    E("s_endpgm")

def issue(h):
    NT = " nt" if OPT['nt'] else ""
    base = SLOT + 32 * (h % NSLOT)
    if h < 2:
        E("s_mov_b32 s48, s47")
        E("s_add_u32 s49, s47, 4096")
        ks, vs = 64, 68
    else:
        n = h // 2 - 1
        st = 32768 if OPT['il'] else 8192
        E("s_add_u32 s48, s40, 0x%x" % (n * st))
        E("s_add_u32 s49, s40, 0x%x" % (n * st + 4096))
        ks, vs = 20, 24
    if h % 2 == 0:
        for t in range(2):
            for j in range(4):
                r = base + (t * 4 + j) * 4
                E("buffer_load_dwordx4 v[%d:%d], v5, s[%d:%d], s%d offen offset:%d%s" % (r, r + 3, ks, ks + 3, 48 + t, j * 64, NT))
    else:
        for t in range(2):
            for rr in range(4):
                r = base + (t * 4 + rr) * 4
                E("buffer_load_dwordx4 v[%d:%d], v6, s[%d:%d], s%d offen offset:%d%s" % (r, r + 3, vs, vs + 3, 48 + t, rr * 256, NT))

def finish_state(ab):
    E("v_mov_b32 v%d, v%d" % (TMP, LS))
    E("s_nop 1")
    E("v_permlane32_swap_b32 v%d, v%d" % (LS, TMP))
    E("v_add_f32 v%d, v%d, v%d" % (LS, LS, TMP))
    E("v_mov_b32 v%d, v%d" % (TMP, LS))
    E("s_nop 1")
    E("v_permlane16_swap_b32 v%d, v%d" % (LS, TMP))
    E("v_add_f32 v%d, v%d, v%d" % (LS, LS, TMP))
    E("v_mov_b32 v%d, v%d" % (MT, M))
    E("v_mov_b32 v%d, v%d" % (TMP, LS))
    E("s_lshl_b32 s41, s14, 11")
    E("v_lshlrev_b32 v7, 6, v4")
    E("v_lshl_add_u32 v7, v3, 4, v7")
    E("v_add_u32 v7, s41, v7")
    E("s_lshl_b32 s41, s14, 5")
    E("v_lshlrev_b32 v14, 3, v3")
    E("v_add_u32 v14, s41, v14")
    E("v_cmp_gt_u32 vcc, 4, v3")
    E("s_and_saveexec_b64 s[50:51], vcc")
    for i in range(8):
        E("ds_write_b128 v7, v[%d:%d] offset:%d" % (ACC + 4 * i, ACC + 4 * i + 3, LDS_ACC + ab * 8192 + i * 256))
    E("ds_write_b64 v14, v[%d:%d] offset:%d" % (MT, TMP, LDS_ML + ab * 128))
    E("s_mov_b64 exec, s[50:51]")

def main_loop(ntiles, tag, wo_prefetch):
    NH = 2 * ntiles
    extra = 0
    ntw = " nt" if OPT['ntw'] else ""
    for n in range(ntiles):
        C("---- tile %d" % n)
        h = 2 * n
        base = SLOT + 32 * (h % NSLOT)
        issued = min(NH, h + NSLOT)
        E("s_waitcnt vmcnt(%d)" % (8 * (issued - h - 1) + extra))
        for j in range(4):
            for t in range(2):
                r = base + (t * 4 + j) * 4
                S = S0 if t == 0 else S1
                c = "0" if j == 0 else "v[%d:%d]" % (S, S + 3)
                QQ = T if n == 0 else Q
                E("v_mfma_f32_16x16x32_bf16 v[%d:%d], v[%d:%d], v[%d:%d], %s" % (S, S + 3, r, r + 3, QQ + 4 * j, QQ + 4 * j + 3, c))
        if h + NSLOT < NH:
            issue(h + NSLOT)
        else:
            E("s_nop 7")
            E("s_nop 1")
        E("v_max3_f32 v%d, v%d, v%d, v%d" % (MT, S0, S0 + 1, S0 + 2))
        E("v_max3_f32 v%d, v%d, v%d, v%d" % (MT2, S0 + 3, S1, S1 + 1))
        E("v_max3_f32 v%d, v%d, v%d, v%d" % (MT, MT, S1 + 2, S1 + 3))
        E("v_max_f32 v%d, v%d, v%d" % (MT, MT, MT2))
        E("v_mov_b32 v%d, v%d" % (TMP, MT))
        E("s_nop 1")
        E("v_permlane32_swap_b32 v%d, v%d" % (MT, TMP))
        E("v_max_f32 v%d, v%d, v%d" % (MT, MT, TMP))
        E("v_mov_b32 v%d, v%d" % (TMP, MT))
        E("s_nop 1")
        E("v_permlane16_swap_b32 v%d, v%d" % (MT, TMP))
        E("v_max3_f32 v%d, v%d, v%d, v%d" % (MT, MT, TMP, M))
        E("v_cmp_gt_f32 vcc, v%d, v%d" % (MT, M))
        E("s_cbranch_vccz L_nors_%s_%d" % (tag, n))
        E("v_sub_f32 v%d, v%d, v%d" % (AL, M, MT))
        E("v_mul_f32 v%d, s46, v%d" % (AL, AL))
        E("v_exp_f32 v%d, v%d" % (AL, AL))
        E("s_nop 0")
        E("v_mul_f32 v%d, v%d, v%d" % (LS, LS, AL))
        for k in range(32):
            E("v_mul_f32 v%d, v%d, v%d" % (ACC + k, ACC + k, AL))
        L("L_nors_%s_%d" % (tag, n))
        E("v_mov_b32 v%d, v%d" % (M, MT))
        E("v_mul_f32 v%d, s46, v%d" % (NMC, MT))
        for k in range(8):
            E("v_fma_f32 v%d, v%d, s46, -v%d" % (S0 + k, S0 + k, NMC))
        for k in range(8):
            E("v_exp_f32 v%d, v%d" % (S0 + k, S0 + k))
        E("s_nop 0")
        for w in range(4):
            E("v_cvt_pk_bf16_f32 v%d, v%d, v%d" % (P + w, S0 + 2 * w, S0 + 2 * w + 1))
        for k in range(8):
            E("v_add_f32 v%d, v%d, v%d" % (LS, LS, S0 + k))
        h = 2 * n + 1
        base = SLOT + 32 * (h % NSLOT)
        issued = min(NH, h + NSLOT)
        E("s_waitcnt vmcnt(%d)" % (8 * (issued - h - 1) + extra))
        def perms(u):
            tb = T + 8 * (u & 1)
            for w in range(4):
                a = base + (2 * w) * 4 + u
                b = base + (2 * w + 1) * 4 + u
                E("v_perm_b32 v%d, v%d, v%d, s44" % (tb + w, b, a))
            for w in range(4):
                a = base + (2 * w) * 4 + u
                b = base + (2 * w + 1) * 4 + u
                E("v_perm_b32 v%d, v%d, v%d, s45" % (tb + 4 + w, b, a))
        def mf(u):
            tb = T + 8 * (u & 1)
            for x in range(2):
                i = 2 * u + x
                E("v_mfma_f32_16x16x32_bf16 v[%d:%d], v[%d:%d], v[%d:%d], v[%d:%d]" % (ACC + 4 * i, ACC + 4 * i + 3, tb + 4 * x, tb + 4 * x + 3, P, P + 3, ACC + 4 * i, ACC + 4 * i + 3))
        perms(0); perms(1); mf(0); perms(2); mf(1); perms(3)
        if h + NSLOT < NH:
            issue(h + NSLOT)
        elif wo_prefetch and h == 13:
            C("wo slice prefetch")
            for ii in range(8):
                E("buffer_load_dwordx4 v[%d:%d], v8, s[32:35], s%d offen offset:%d%s" % (WREG + 4 * ii, WREG + 4 * ii + 3, 56 + (ii >> 2), (ii & 3) * 1024, ntw))
            extra = 8
        mf(2)
        E("s_nop 1")
        mf(3)
        if n == 0:
            finish_state(1)
            E("s_waitcnt lgkmcnt(0)")
            init_state()
    finish_state(0)

def init_state():
    for k in range(32):
        E("v_mov_b32 v%d, 0" % (ACC + k))
    E("v_mov_b32 v%d, 0x%08x" % (M, NEGBIG))
    E("v_mov_b32 v%d, 0" % LS)

def spin(label, sleep):
    E("s_cbranch_vccz %s_done" % label)
    E("s_add_u32 s60, s60, 1")
    E("s_cmp_lt_u32 s60, 0x40000")
    E("s_cbranch_scc0 %s_done" % label)
    E("s_sleep %d" % sleep)
    E("s_branch %s" % label)
    L(label + "_done")

def gen_main():
    kbegin("concat_heads__gqa_block_cached__sliding_block_cached__decode_kernel")
    CURK[0] = 1
    E("s_cmp_ge_u32 s2, 256")
    E("s_cbranch_scc1 L_end")
    E("s_load_dwordx2 s[4:5], s[0:1], 0")
    E("s_load_dwordx2 s[6:7], s[0:1], 8")
    E("s_load_dwordx2 s[8:9], s[0:1], 16")
    E("s_load_dwordx2 s[10:11], s[0:1], 24")
    E("s_load_dwordx2 s[12:13], s[0:1], 32")
    E("s_load_dwordx2 s[62:63], s[0:1], 40")
    E("s_load_dwordx2 s[64:65], s[0:1], 48")
    E("s_load_dwordx2 s[66:67], s[0:1], 56")
    E("s_load_dwordx2 s[76:77], s[0:1], 64")
    E("s_load_dwordx2 s[70:71], s[0:1], 72")
    E("s_load_dwordx2 s[72:73], s[0:1], 80")
    E("s_load_dwordx2 s[36:37], s[0:1], 88")
    E("s_load_dwordx2 s[28:29], s[0:1], 96")
    E("v_lshrrev_b32 v1, 6, v0")
    E("v_and_b32 v2, 63, v0")
    E("v_readfirstlane_b32 s14, v1")
    roles()
    E("s_lshr_b32 s15, s2, 7")
    E("s_lshl_b32 s18, s16, 4")
    E("s_and_b32 s19, s17, 15")
    E("s_or_b32 s18, s18, s19")
    E("s_lshl_b32 s56, s55, 17")
    E("s_lshl_b32 s57, s54, 8")
    E("s_add_u32 s56, s56, s57")
    E("s_add_u32 s57, s56, 4096")
    E("v_and_b32 v3, 15, v2")
    E("v_lshrrev_b32 v4, 4, v2")
    E("v_lshlrev_b32 v5, 8, v3")
    E("v_lshl_add_u32 v5, v4, 4, v5")
    E("v_lshlrev_b32 v6, 10, v4")
    E("v_lshl_add_u32 v6, v3, 4, v6")
    E("s_mov_b32 s44, 0x05040100")
    E("s_mov_b32 s45, 0x07060302")
    E("s_mov_b32 s46, 0x%08x" % CS_BITS)
    E("s_lshl_b32 s40, s16, 23")
    E("s_lshl_b32 s41, s17, 15")
    E("s_lshl_b32 s42, s14, 13")
    E("s_add_u32 s47, s40, s41")
    E("s_add_u32 s47, s47, s42")
    E("s_add_u32 s47, s47, 0x%x" % (28672 * 256))
    E("s_lshl_b32 s41, s17, 18")
    E("s_lshl_b32 s42, s14, %d" % (13 if OPT['il'] else 16))
    E("s_add_u32 s40, s40, s41")
    E("s_add_u32 s40, s40, s42")
    E("v_lshrrev_b32 v8, 4, v0")
    E("v_lshlrev_b32 v8, 13, v8")
    E("v_lshl_add_u32 v8, v3, 4, v8")
    E("v_and_b32 v10, 3, v0")
    E("v_lshrrev_b32 v11, 2, v0")
    E("v_lshlrev_b32 v12, 13, v11")
    E("v_lshl_add_u32 v12, v10, 4, v12")
    E("v_lshlrev_b32 v13, 1, v11")
    E("v_lshlrev_b32 v7, 4, v2")
    E("s_lshl_b32 s41, s18, 6")
    for i in range(8):
        E("s_add_u32 s%d, s41, 0x%x" % (84 + i, i * 0x80000))
    for k in range(4):
        E("v_mov_b32 v%d, -1" % (88 + k))
    E("s_waitcnt lgkmcnt(0)")
    srd(28, WS_SIZE)
    srd(36, 256)
    srd(72, 2048)
    E("s_cmp_eq_u32 s52, 0")
    E("s_cselect_b64 s[32:33], s[12:13], s[70:71]")
    srd(32, 0x400000)
    E("s_cmp_eq_u32 s15, 0")
    E("s_cselect_b64 s[80:81], s[10:11], s[76:77]")
    E("s_cselect_b64 s[76:77], s[4:5], s[62:63]")
    srd(76, 1024)
    srd(80, 0x400000)
    E("s_mov_b64 s[20:21], s[6:7]")
    E("s_mov_b64 s[24:25], s[8:9]")
    E("s_mov_b64 s[68:69], s[66:67]")
    srd(20, 0x4000000)
    srd(24, 0x4000000)
    srd(64, 0x4000000)
    srd(68, 0x4000000)
    if OPT['stamp'] == 1: E("v_mov_b32 v92, 0")
    stamp(0)
    ntw = " nt" if OPT['ntw'] else ""
    def wq_loads():
        for i in range(8):
            E("buffer_load_dwordx4 v[%d:%d], v12, s[80:83], s%d offen%s" % (32 + 4 * i, 35 + 4 * i, 84 + i, ntw))
        for i in range(8):
            E("buffer_load_ushort v%d, v13, s[76:79], 0 offen offset:%d" % (64 + i, i * 128))
    E("s_cmp_eq_u32 s14, 0")
    E("s_cbranch_scc1 L_c0")
    wq_loads()
    for h in range(OPT['pace']):
        issue(h)
    E("s_waitcnt vmcnt(%d)" % (8 * OPT['pace']))
    E("s_branch L_cd")
    L("L_c0")
    E("s_setprio 3")
    C("sentinel clears (write-through): O_A, O_B, OP, ML_A, ML_B, q slot")
    E("s_lshl_b32 s41, s2, 11")
    E("s_add_u32 s41, s41, 0x%x" % WS_O)
    E("s_add_u32 s42, s41, 0x%x" % (256 * 2048))
    E("buffer_store_dwordx4 v[88:91], v7, s[28:31], s41 offen sc1")
    E("buffer_store_dwordx4 v[88:91], v7, s[28:31], s41 offen offset:1024 sc1")
    E("buffer_store_dwordx4 v[88:91], v7, s[28:31], s42 offen sc1")
    E("buffer_store_dwordx4 v[88:91], v7, s[28:31], s42 offen offset:1024 sc1")
    E("s_lshl_b32 s41, s52, 2")
    E("s_add_u32 s41, s41, s54")
    E("s_lshl_b32 s41, s41, 5")
    E("s_add_u32 s41, s41, s55")
    E("s_lshl_b32 s41, s41, 9")
    E("s_add_u32 s41, s41, 0x%x" % WS_OP)
    E("v_cmp_gt_u32 vcc, 32, v2")
    E("s_and_saveexec_b64 s[50:51], vcc")
    E("buffer_store_dwordx4 v[88:91], v7, s[28:31], s41 offen sc1")
    E("v_cmp_gt_u32 vcc, 4, v2")
    E("s_and_b64 exec, exec, vcc")
    E("s_lshl_b32 s41, s15, 14")
    E("s_lshl_b32 s42, s18, 7")
    E("s_add_u32 s58, s41, s42")
    E("buffer_store_dwordx4 v[88:91], v7, s[28:31], s58 offen offset:%d sc1" % WS_Q)
    E("v_cmp_gt_u32 vcc, 2, v2")
    E("s_and_b64 exec, exec, vcc")
    E("s_lshl_b32 s41, s2, 7")
    E("s_add_u32 s41, s41, 0x%x" % WS_ML)
    E("s_add_u32 s42, s41, 0x%x" % (256 * 128))
    E("buffer_store_dwordx4 v[88:91], v7, s[28:31], s41 offen sc1")
    E("buffer_store_dwordx4 v[88:91], v7, s[28:31], s42 offen sc1")
    E("s_mov_b64 exec, s[50:51]")
    wq_loads()
    for h in range(OPT['w0pf']):
        issue(h)
    W0 = 8 * OPT['w0pf']
    E("s_waitcnt vmcnt(%d)" % (16 + W0))
    stamp(2)
    NC = OPT['nc']
    if NC == 1:
        E("s_mov_b32 s41, 0")
        E("s_movk_i32 s59, 255")
    elif NC == 2:
        E("s_and_b32 s41, s2, 1")
        E("s_lshl_b32 s41, s41, 6")
        E("s_movk_i32 s59, 127")
    elif NC == 4:
        E("s_and_b32 s41, s2, 3")
        E("s_lshl_b32 s41, s41, 6")
        E("s_movk_i32 s59, 63")
    E("v_cmp_eq_u32 vcc, 0, v2")
    E("s_and_saveexec_b64 s[50:51], vcc")
    E("v_mov_b32 v14, s41")
    E("v_mov_b32 v9, 1")
    E("buffer_atomic_add v9, v14, s[36:39], 0 offen sc0 sc1")
    E("s_mov_b64 exec, s[50:51]")
    E("s_waitcnt vmcnt(%d)" % (1 + W0))
    L("L_cd")
    for k in range(8):
        E("v_mov_b32 v%d, 0" % (72 + k))
    for i in range(8):
        E("v_lshlrev_b32 v%d, 16, v%d" % (64 + i, 64 + i))
    for i in range(8):
        for u in range(4):
            src = 32 + 4 * i + u
            E("v_lshlrev_b32 v80, 16, v%d" % src)
            E("v_and_b32 v81, 0xffff0000, v%d" % src)
            E("v_fmac_f32 v%d, v%d, v80" % (72 + 2 * u, 64 + i))
            E("v_fmac_f32 v%d, v%d, v81" % (73 + 2 * u, 64 + i))
    E("s_nop 1")
    for k in range(8):
        E("v_add_f32_dpp v%d, v%d, v%d row_ror:4 row_mask:0xf bank_mask:0xf" % (80 + k, 72 + k, 72 + k))
    E("s_nop 1")
    for k in range(8):
        E("v_add_f32_dpp v%d, v%d, v%d row_ror:8 row_mask:0xf bank_mask:0xf" % (72 + k, 80 + k, 80 + k))
    E("v_lshrrev_b32 v14, 4, v0")
    E("v_lshlrev_b32 v14, 7, v14")
    E("v_lshl_add_u32 v14, v10, 5, v14")
    E("v_cmp_gt_u32 vcc, 4, v3")
    E("s_and_saveexec_b64 s[50:51], vcc")
    E("ds_write_b128 v14, v[72:75] offset:%d" % LDS_QP)
    E("ds_write_b128 v14, v[76:79] offset:%d" % (LDS_QP + 16))
    E("s_mov_b64 exec, s[50:51]")
    E("s_waitcnt lgkmcnt(0)")
    stamp(1)
    E("s_barrier")
    E("s_cmp_eq_u32 s14, 0")
    E("s_cbranch_scc1 L_helper")
    for h in range(OPT['pace'], NSLOT):
        E("s_waitcnt vmcnt(%d)" % (8 * (OPT['pace'] - 1)))
        issue(h)
    E("s_barrier")
    E("s_branch L_go")
    L("L_helper")
    E("v_cmp_gt_u32 vcc, 32, v2")
    E("s_and_saveexec_b64 s[50:51], vcc")
    E("v_lshlrev_b32 v14, 2, v2")
    for r in range(16):
        E("ds_read_b32 v%d, v14 offset:%d" % (32 + r, LDS_QP + r * 128))
    E("s_waitcnt lgkmcnt(0)")
    for r in range(1, 16):
        E("v_add_f32 v32, v32, v%d" % (32 + r))
    E("s_nop 1")
    E("v_mov_b32_dpp v33, v32 quad_perm:[1,0,3,2] row_mask:0xf bank_mask:0xf")
    E("s_nop 0")
    E("v_cvt_pk_bf16_f32 v32, v32, v33")
    E("v_and_b32 v14, 1, v2")
    E("v_cmp_eq_u32 vcc, 0, v14")
    E("s_and_b64 exec, exec, vcc")
    E("v_lshlrev_b32 v14, 1, v2")
    E("buffer_store_dword v32, v14, s[28:31], s58 offen offset:%d sc1" % WS_Q)
    E("s_mov_b64 exec, s[50:51]")
    E("s_waitcnt vmcnt(1)")
    stamp(7)
    if OPT['direct'] == 0:
        E("v_readfirstlane_b32 s43, v9")
        E("s_cmp_lg_u32 s43, s59")
        E("s_cbranch_scc1 L_notlast")
        E("v_cmp_eq_u32 vcc, 0, v2")
        E("s_and_saveexec_b64 s[50:51], vcc")
        E("v_mov_b32 v14, 192")
        E("v_mov_b32 v15, 1")
        E("buffer_atomic_add v15, v14, s[36:39], 0 offen sc1")
        E("s_mov_b64 exec, s[50:51]")
        L("L_notlast")
        E("s_mov_b32 s60, 0")
        E("v_mov_b32 v14, 192")
        L("L_pq")
        E("buffer_load_dword v15, v14, s[36:39], 0 offen sc1")
        E("s_waitcnt vmcnt(0)")
        E("v_cmp_gt_u32 vcc, %d, v15" % OPT['nc'])
        spin("L_pq", OPT['slq'])
    else:
        E("s_mov_b32 s60, 0")
        E("v_and_b32 v14, %d, v2" % (OPT['nc'] - 1))
        E("v_lshlrev_b32 v14, 6, v14")
        L("L_pq")
        E("buffer_load_dword v15, v14, s[36:39], 0 offen sc1")
        E("s_waitcnt vmcnt(0)")
        E("v_cmp_gt_u32 vcc, %d, v15" % (256 // OPT['nc']))
        spin("L_pq", OPT['slq'])
    stamp(8)
    E("v_lshrrev_b32 v14, 2, v2")
    E("v_lshlrev_b32 v14, 7, v14")
    E("v_and_b32 v15, 3, v2")
    E("v_lshl_add_u32 v14, v15, 4, v14")
    E("s_lshl_b32 s41, s16, 11")
    E("s_add_u32 s42, s41, 16384")
    L("L_pqd")
    E("buffer_load_dwordx4 v[64:67], v14, s[28:31], s41 offen offset:%d sc1" % WS_Q)
    E("buffer_load_dwordx4 v[68:71], v14, s[28:31], s42 offen offset:%d sc1" % WS_Q)
    E("s_waitcnt vmcnt(0)")
    E("v_max3_u32 v15, v64, v65, v66")
    E("v_max3_u32 v15, v15, v67, v68")
    E("v_max3_u32 v15, v15, v69, v70")
    E("v_max_u32 v15, v15, v71")
    E("v_cmp_eq_u32 vcc, -1, v15")
    spin("L_pqd", 1)
    E("ds_write_b128 v7, v[64:67] offset:%d" % LDS_Q)
    E("ds_write_b128 v7, v[68:71] offset:%d" % (LDS_Q + 1024))
    E("s_waitcnt lgkmcnt(0)")
    E("s_setprio 0")
    E("s_barrier")
    for h in range(OPT['w0pf'], NSLOT):
        issue(h)
    L("L_go")
    stamp(9)
    for k in range(16):
        E("v_mov_b32 v%d, 0" % (Q + k))
        E("v_mov_b32 v%d, 0" % (T + k))
    E("v_cmp_gt_u32 vcc, 4, v3")
    E("s_and_saveexec_b64 s[50:51], vcc")
    for j in range(4):
        E("ds_read_b128 v[%d:%d], v5 offset:%d" % (Q + 4 * j, Q + 4 * j + 3, LDS_Q + j * 64))
        E("ds_read_b128 v[%d:%d], v5 offset:%d" % (T + 4 * j, T + 4 * j + 3, LDS_Q + 1024 + j * 64))
    E("s_mov_b64 exec, s[50:51]")
    init_state()
    E("s_waitcnt lgkmcnt(0)")
    main_loop(9, "a", True)
    stamp(3)
    E("s_waitcnt lgkmcnt(0)")
    E("s_barrier")
    E("s_lshr_b32 s15, s14, 1")
    E("v_bfe_u32 v16, v0, 4, 3")
    E("v_bfe_u32 v17, v0, 2, 2")
    E("v_and_b32 v18, 3, v0")
    E("v_lshlrev_b32 v19, 8, v16")
    E("v_lshl_add_u32 v19, v17, 6, v19")
    E("v_lshl_add_u32 v19, v18, 4, v19")
    E("s_lshl_b32 s41, s15, 13")
    E("v_add_u32 v19, s41, v19")
    E("v_lshlrev_b32 v20, 3, v18")
    E("s_lshl_b32 s41, s15, 7")
    E("v_add_u32 v22, s41, v20")
    for w in range(4):
        E("ds_read_b128 v[%d:%d], v19 offset:%d" % (32 + 4 * w, 35 + 4 * w, LDS_ACC + w * 2048))
    for w in range(4):
        E("ds_read_b64 v[%d:%d], v22 offset:%d" % (48 + 2 * w, 49 + 2 * w, LDS_ML + w * 32))
    E("s_waitcnt lgkmcnt(0)")
    E("v_max3_f32 v56, v48, v50, v52")
    E("v_max_f32 v56, v56, v54")
    for w in range(4):
        E("v_sub_f32 v%d, v%d, v56" % (58 + w, 48 + 2 * w))
        E("v_mul_f32 v%d, s46, v%d" % (58 + w, 58 + w))
        E("v_exp_f32 v%d, v%d" % (58 + w, 58 + w))
    E("s_nop 0")
    E("v_mul_f32 v57, v58, v49")
    for w in range(1, 4):
        E("v_fmac_f32 v57, v%d, v%d" % (58 + w, 49 + 2 * w))
    for r in range(4):
        E("v_mul_f32 v%d, v58, v%d" % (64 + r, 32 + r))
        for w in range(1, 4):
            E("v_fmac_f32 v%d, v%d, v%d" % (64 + r, 58 + w, 32 + 4 * w + r))
    E("s_lshl_b32 s42, s15, 8")
    E("s_add_u32 s42, s42, s2")
    E("s_lshl_b32 s41, s42, 11")
    E("s_add_u32 s41, s41, 0x%x" % WS_O)
    E("v_lshlrev_b32 v21, 9, v18")
    E("v_lshl_add_u32 v21, v16, 6, v21")
    E("v_lshl_add_u32 v21, v17, 4, v21")
    E("buffer_store_dwordx4 v[64:67], v21, s[28:31], s41 offen sc1")
    E("v_and_b32 v23, 127, v0")
    E("v_cmp_gt_u32 vcc, 4, v23")
    E("s_and_saveexec_b64 s[50:51], vcc")
    E("s_lshl_b32 s41, s42, 7")
    E("s_add_u32 s41, s41, 0x%x" % WS_ML)
    E("buffer_store_dwordx2 v[56:57], v20, s[28:31], s41 offen sc1")
    E("s_mov_b64 exec, s[50:51]")
    stamp(4)
    E("s_lshl_b32 s40, s52, 8")
    E("s_add_u32 s40, s40, s16")
    E("v_and_b32 v16, 31, v0")
    E("v_lshlrev_b32 v17, 10, v16")
    E("s_lshl_b32 s41, s40, 7")
    E("s_lshl_b32 s42, s53, 3")
    E("s_add_u32 s41, s41, s42")
    E("s_add_u32 s41, s41, 0x%x" % WS_ML)
    E("v_lshrrev_b32 v18, 5, v0")
    E("v_lshlrev_b32 v19, 16, v18")
    E("v_lshl_add_u32 v19, v16, 4, v19")
    E("s_lshl_b32 s84, s40, 11")
    E("s_lshl_b32 s42, s53, 9")
    E("s_add_u32 s84, s84, s42")
    E("s_add_u32 s84, s84, 0x%x" % WS_O)
    for u in range(1, 4):
        E("s_add_u32 s%d, s84, 0x%x" % (84 + u, u * 16384))
    E("s_mov_b32 s60, 0")
    E("buffer_load_dwordx2 v[20:21], v17, s[28:31], s41 offen sc1")
    for u in range(4):
        E("buffer_load_dwordx4 v[%d:%d], v19, s[28:31], s%d offen sc1" % (32 + 4 * u, 35 + 4 * u, 84 + u))
    E("s_waitcnt vmcnt(5)")
    C("unpack wo slice to fp32 while waiting")
    for ii in range(8):
        for u in range(4):
            src = WREG + 4 * ii + u
            E("v_lshlrev_b32 v%d, 16, v%d" % (96 + 8 * ii + 2 * u, src))
            E("v_and_b32 v%d, 0xffff0000, v%d" % (97 + 8 * ii + 2 * u, src))
    E("s_branch L_pchk")
    L("L_pml")
    E("buffer_load_dwordx2 v[20:21], v17, s[28:31], s41 offen sc1")
    E("s_mov_b64 exec, s[62:63]")
    E("s_cbranch_execz L_pskip")
    for u in range(4):
        E("buffer_load_dwordx4 v[%d:%d], v19, s[28:31], s%d offen sc1" % (32 + 4 * u, 35 + 4 * u, 84 + u))
    L("L_pskip")
    E("s_mov_b64 exec, -1")
    L("L_pchk")
    E("s_waitcnt vmcnt(0)")
    E("v_max3_u32 v22, v32, v33, v34")
    for k in range(35, 47, 2):
        E("v_max3_u32 v22, v22, v%d, v%d" % (k, k + 1))
    E("v_max_u32 v22, v22, v47")
    E("v_cmp_eq_u32 s[62:63], -1, v22")
    E("v_max_u32 v22, v20, v21")
    E("v_cmp_eq_u32 vcc, -1, v22")
    E("s_or_b64 vcc, vcc, s[62:63]")
    spin("L_pml", OPT['sl1'])
    stamp(5)
    E("v_mov_b32 v22, v20")
    for sh in (1, 2, 4, 8):
        E("s_nop 1")
        E("v_max_f32_dpp v22, v22, v22 row_ror:%d row_mask:0xf bank_mask:0xf" % sh)
    E("v_mov_b32 v23, v22")
    E("s_nop 1")
    E("v_permlane16_swap_b32 v22, v23")
    E("v_max_f32 v22, v22, v23")
    E("v_sub_f32 v20, v20, v22")
    E("v_mul_f32 v20, s46, v20")
    E("v_exp_f32 v20, v20")
    E("s_nop 0")
    E("v_mul_f32 v21, v20, v21")
    for sh in (1, 2, 4, 8):
        E("s_nop 1")
        E("v_add_f32_dpp v21, v21, v21 row_ror:%d row_mask:0xf bank_mask:0xf" % sh)
    E("v_mov_b32 v23, v21")
    E("s_nop 1")
    E("v_permlane16_swap_b32 v21, v23")
    E("v_add_f32 v21, v21, v23")
    E("v_rcp_f32 v21, v21")
    E("v_lshlrev_b32 v24, 4, v18")
    for u in range(4):
        E("v_add_u32 v23, %d, v24" % (4 * u))
        E("ds_bpermute_b32 v%d, v23, v20" % (64 + u))
    E("s_waitcnt lgkmcnt(0)")
    for r in range(4):
        E("v_mul_f32 v%d, v64, v%d" % (68 + r, 32 + r))
        for u in range(1, 4):
            E("v_fmac_f32 v%d, v%d, v%d" % (68 + r, 64 + u, 32 + 4 * u + r))
    for r in range(4):
        E("v_mov_b32 v%d, v%d" % (72 + r, 68 + r))
    E("s_nop 1")
    for r in range(4):
        E("v_permlane32_swap_b32 v%d, v%d" % (68 + r, 72 + r))
    for r in range(4):
        E("v_add_f32 v%d, v%d, v%d" % (68 + r, 68 + r, 72 + r))
    E("v_lshlrev_b32 v23, 9, v1")
    E("v_and_b32 v24, 3, v16")
    E("v_lshl_add_u32 v23, v24, 7, v23")
    E("v_lshrrev_b32 v24, 2, v16")
    E("v_lshl_add_u32 v23, v24, 2, v23")
    for r in range(4):
        E("ds_write_b32 v23, v%d offset:%d" % (68 + r, LDS_T1 + r * 32))
    E("v_lshrrev_b32 v25, 4, v0")
    E("v_lshlrev_b32 v23, 5, v25")
    E("s_waitcnt lgkmcnt(0)")
    E("s_barrier")
    for w in range(4):
        E("ds_read_b128 v[%d:%d], v23 offset:%d" % (32 + 8 * w, 35 + 8 * w, LDS_T1 + w * 512))
        E("ds_read_b128 v[%d:%d], v23 offset:%d" % (36 + 8 * w, 39 + 8 * w, LDS_T1 + w * 512 + 16))
    E("s_waitcnt lgkmcnt(0)")
    for ii in range(8):
        E("v_add_f32 v%d, v%d, v%d" % (32 + ii, 32 + ii, 40 + ii))
        E("v_add_f32 v%d, v%d, v%d" % (48 + ii, 48 + ii, 56 + ii))
    for ii in range(8):
        E("v_add_f32 v%d, v%d, v%d" % (32 + ii, 32 + ii, 48 + ii))
    for ii in range(8):
        E("v_mul_f32 v%d, v%d, v21" % (32 + ii, 32 + ii))
    for ii in range(8):
        E("v_cvt_pk_bf16_f32 v%d, v%d, v%d" % (32 + ii, 32 + ii, 32 + ii))
    for ii in range(8):
        E("v_lshlrev_b32 v%d, 16, v%d" % (64 + ii, 32 + ii))
    for k in range(8):
        E("v_mul_f32 v%d, v64, v%d" % (72 + k, 96 + k))
    for ii in range(1, 8):
        for k in range(8):
            E("v_fmac_f32 v%d, v%d, v%d" % (72 + k, 64 + ii, 96 + 8 * ii + k))
    for k in range(8):
        E("v_mov_b32 v%d, v%d" % (80 + k, 72 + k))
    E("s_nop 1")
    for k in range(8):
        E("v_permlane16_swap_b32 v%d, v%d" % (72 + k, 80 + k))
    for k in range(8):
        E("v_add_f32 v%d, v%d, v%d" % (72 + k, 72 + k, 80 + k))
    for k in range(8):
        E("v_mov_b32 v%d, v%d" % (80 + k, 72 + k))
    E("s_nop 1")
    for k in range(8):
        E("v_permlane32_swap_b32 v%d, v%d" % (72 + k, 80 + k))
    for k in range(8):
        E("v_add_f32 v%d, v%d, v%d" % (72 + k, 72 + k, 80 + k))
    E("v_lshlrev_b32 v23, 9, v1")
    E("v_lshl_add_u32 v23, v3, 5, v23")
    E("ds_write_b128 v23, v[72:75] offset:%d" % LDS_T3)
    E("ds_write_b128 v23, v[76:79] offset:%d" % (LDS_T3 + 16))
    E("s_waitcnt lgkmcnt(0)")
    E("s_barrier")
    E("s_lshl_b32 s40, s52, 2")
    E("s_add_u32 s40, s40, s54")
    E("s_lshl_b32 s41, s40, 14")
    E("s_add_u32 s41, s41, 0x%x" % WS_OP)
    E("s_lshl_b32 s42, s55, 9")
    E("s_add_u32 s42, s42, s41")
    E("v_cmp_gt_u32 vcc, 128, v0")
    E("s_and_saveexec_b64 s[50:51], vcc")
    E("v_lshlrev_b32 v23, 2, v0")
    for w in range(4):
        E("ds_read_b32 v%d, v23 offset:%d" % (68 + w, LDS_T3 + w * 512))
    E("s_waitcnt lgkmcnt(0)")
    E("v_add_f32 v68, v68, v69")
    E("v_add_f32 v70, v70, v71")
    E("v_add_f32 v68, v68, v70")
    E("buffer_store_dword v68, v23, s[28:31], s42 offen sc1")
    E("s_mov_b64 exec, s[50:51]")
    stamp(6)
    stamp_flush()
    E("s_lshl_b32 s43, s40, 2")
    E("s_cmp_lg_u32 s43, s55")
    E("s_cbranch_scc1 L_end")
    E("v_and_b32 v23, 127, v0")
    E("v_lshrrev_b32 v24, 7, v0")
    E("v_lshlrev_b32 v25, 13, v24")
    E("v_lshl_add_u32 v25, v23, 2, v25")
    E("s_add_u32 s42, s41, 4096")
    E("s_mov_b32 s60, 0")
    L("L_pf")
    for i in range(16):
        E("buffer_load_dword v%d, v25, s[28:31], s%d offen offset:%d sc1" % (32 + i, 41 if i < 8 else 42, (i & 7) * 512))
    E("s_waitcnt vmcnt(0)")
    E("v_max3_u32 v22, v32, v33, v34")
    for k in range(35, 47, 2):
        E("v_max3_u32 v22, v22, v%d, v%d" % (k, k + 1))
    E("v_max_u32 v22, v22, v47")
    E("v_cmp_eq_u32 vcc, -1, v22")
    spin("L_pf", OPT['sl3'])
    for i in range(1, 16):
        E("v_add_f32 v32, v32, v%d" % (32 + i))
    E("v_lshlrev_b32 v25, 2, v0")
    E("ds_write_b32 v25, v32 offset:%d" % LDS_T4)
    E("s_waitcnt lgkmcnt(0)")
    E("s_barrier")
    E("v_cmp_gt_u32 vcc, 128, v0")
    E("s_and_saveexec_b64 s[50:51], vcc")
    E("s_cbranch_execz L_end")
    E("ds_read_b32 v33, v25 offset:%d" % (LDS_T4 + 512))
    E("s_waitcnt lgkmcnt(0)")
    E("v_add_f32 v32, v32, v33")
    E("v_cvt_pk_bf16_f32 v32, v32, v32")
    E("s_lshl_b32 s43, s40, 8")
    E("v_lshlrev_b32 v25, 1, v0")
    E("buffer_store_short v32, v25, s[72:75], s43 offen")
    E("s_endpgm")
    L("L_end")
    E("s_endpgm")

def main():
    for o in sys.argv[2:]:
        k, v = o.split('=')
        assert k in OPT, k
        OPT[k] = int(v)
    out.append(HEADER.rstrip())
    out.append("; @launch grid=(256,1,1) block=(256,1,1) lds=%d" % LDS_TOTAL)
    out.append('.amdgcn_target "amdgcn-amd-amdhsa--gfx950"')
    out.append(".text")
    gen_main()
    out.append('.section .rodata,"a"')
    out.append(kd("concat_heads__gqa_block_cached__sliding_block_cached__decode_kernel", 256))
    open(sys.argv[1], 'w').write("\n".join(out) + "\n")
main()
```
